```python
import torch

def _softmax(x, axis=-1):
    return torch.softmax(x, dim=axis)
def _gelu(x):
    return torch.nn.functional.gelu(x, approximate="tanh")
def _silu(x):
    return torch.nn.functional.silu(x)
def _sigmoid(x):
    return torch.sigmoid(x)
def _layernorm(x, axis=-1, eps=1e-5):
    m = x.mean(dim=axis, keepdim=True)
    v = x.var(dim=axis, keepdim=True, unbiased=False)
    return (x - m) / torch.sqrt(v + eps)
def _scatter_add(tgt, idx, src, axis=0):
    return tgt.clone().index_add_(axis, idx, src)
def _segment_sum(src, seg, n):
    out = torch.zeros((n,) + src.shape[1:], dtype=src.dtype)
    return out.index_add_(0, seg, src)
def _pad(x, pw):
    flat = tuple(v for pair in reversed(pw) for v in pair)
    return torch.nn.functional.pad(x, flat)

kernel_name = 'recurrent_scan__sliding_block_cached__glu_gated_bilinear__prompt'

def setup_inputs():

    _w = (lambda a: (lambda t: t.to(torch.bfloat16) if t.is_floating_point() else t)(torch.as_tensor(a)))
    def _A_setup():
        B, Sq, D = 1, 2048, 448
        Hq, Hkv, Sk, Dh = 16, 8, 2048, 256
        assert Hq % Hkv == 0, (Hq, Hkv)
        return {
            "x": _w((lambda *s: torch.randn(*s, dtype=torch.bfloat16) * 0.05)(B, Sq, D)),
            "k_cache": _w((lambda *s: torch.randn(*s, dtype=torch.bfloat16) * 1.6)(B, Hkv, Sk, Dh)),
            "v_cache": _w((lambda *s: torch.randn(*s, dtype=torch.bfloat16) * 1.6)(B, Hkv, Sk, Dh)),
            "wq": _w((lambda *s: torch.randn(*s, dtype=torch.bfloat16) * 1.6)(D, Hq * Dh) * (D ** -0.5)),
            "wo": _w((lambda *s: torch.randn(*s, dtype=torch.bfloat16) * 1.6)(Hq * Dh, D) * ((Hq * Dh) ** -0.5)),
        }
    _A_in = _A_setup()

    def _B_setup():
        B, S, D, F = 1, 2048, 448, 1792
        return {
            "x": _w((lambda *s: torch.randn(*s, dtype=torch.bfloat16) * 0.05)(B, S, D)),
            "w_gate": _w((lambda *s: torch.randn(*s, dtype=torch.bfloat16) * 0.2)(D, F) * (D ** -0.5)),
            "w_up": _w((lambda *s: torch.randn(*s, dtype=torch.bfloat16) * 0.2)(D, F) * (D ** -0.5)),
            "w_down": _w((lambda *s: torch.randn(*s, dtype=torch.bfloat16) * 0.2)(F, D) * (F ** -0.5)),
        }
    _B_in = _B_setup()

    return {
        "A_x": _A_in["x"],
        "A_k_cache": _A_in["k_cache"],
        "A_v_cache": _A_in["v_cache"],
        "A_wq": _A_in["wq"],
        "A_wo": _A_in["wo"],
        "B_x": _B_in["x"],
        "B_w_gate": _B_in["w_gate"],
        "B_w_up": _B_in["w_up"],
        "B_w_down": _B_in["w_down"],
    }

def reference(A_x, A_k_cache, A_v_cache, A_wq, A_wo, B_x, B_w_gate, B_w_up, B_w_down):
    def _A_ref(x, k_cache, v_cache, wq, wo):
        B, Sq, D = x.shape
        Hq, Dh = 16, 256
        Hkv, Sk = k_cache.shape[1], k_cache.shape[2]
        W = min(4096, max(256, Sk // 4))
        rep = Hq // Hkv
        q = (lambda x, *d: x.permute(*d))((x @ wq).reshape(B, Sq, Hq, Dh), 0, 2, 1, 3)
        k = (lambda x, n, axis: torch.repeat_interleave(x, n, dim=axis))(k_cache[:, :, Sk - W:, :], rep, axis=1)
        v = (lambda x, n, axis: torch.repeat_interleave(x, n, dim=axis))(v_cache[:, :, Sk - W:, :], rep, axis=1)
        scores = torch.einsum("bhqd,bhkd->bhqk", q, k) * (Dh ** -0.5)
        p = _softmax(scores, axis=-1)
        o = torch.einsum("bhqk,bhkd->bhqd", p, v)
        return (lambda x, *d: x.permute(*d))(o, 0, 2, 1, 3).reshape(B, Sq, Hq * Dh) @ wo

    def _B_ref(x, w_gate, w_up, w_down):
        g = torch.einsum("bsd,df->bsf", x, w_gate)
        u = torch.einsum("bsd,df->bsf", x, w_up)
        h = g * u
        return torch.einsum("bsf,fd->bsd", h, w_down)

    x = A_x
    xn = _layernorm(x, axis=-1)
    s = _A_ref(xn, A_k_cache, A_v_cache, A_wq, A_wo)
    g = _silu(_B_ref(xn, B_w_gate, B_w_up, B_w_down))
    return x + s * g
```

```python
import re

def R(kind, base, n=1):
    return [(kind, base + i) for i in range(n)]
def rs(kind, base, n=1):
    return f"{kind}{base}" if n == 1 else f"{kind}[{base}:{base+n-1}]"

class I:
    __slots__ = ("t", "k", "rd", "wr", "cost", "tag", "need", "srcc", "stage", "data")
    def __init__(s, t, k, rd=(), wr=(), cost=1, tag=None, need=None, srcc=(), stage=None, data=()):
        s.t, s.k, s.rd, s.wr, s.cost, s.tag, s.need, s.srcc, s.stage, s.data = t, k, list(rd), list(wr), cost, tag, need, list(srcc), stage, list(data)
    def __repr__(s): return s.t

_opre = re.compile(r"^(-?)(?:abs\()?([vas])(\d+|\[(\d+):(\d+)\])\)?$")
def regs_of(op):
    m = _opre.match(op.strip())
    if not m: return []
    k = m.group(2)
    if m.group(4) is not None: return R(k, int(m.group(4)), int(m.group(5)) - int(m.group(4)) + 1)
    return [(k, int(m.group(3)))]

TRANS = ("v_exp_f32", "v_rcp_f32", "v_rsq_f32", "v_log_f32", "v_sqrt_f32")
def V(op, dst, *src, mods=""):
    rd = []
    for x in src: rd += regs_of(str(x))
    wr = regs_of(dst)
    if op.startswith("v_fmac") or op.startswith("v_dot2c"): rd += wr
    if op.startswith("v_permlane32_swap"):
        wr = wr + regs_of(src[0]); rd += regs_of(dst)
    k = "trans" if op in TRANS else ("perm" if "permlane" in op else ("dot" if "dot2" in op else "valu"))
    if op.startswith("v_cmp"): wr = wr + ([("s", 106), ("s", 107)] if dst == "vcc" else [])
    if op.startswith("v_cndmask") and len(src) == 3 and src[2] == "vcc": rd += [("s", 106), ("s", 107)]
    if op in ("v_readfirstlane_b32", "v_readlane_b32"): k = "rfl"
    return I(f"{op} {dst}, " + ", ".join(str(x) for x in src) + mods, k, rd, wr, cost=2 if k == "trans" else 1)
def S(op, dst, *src):
    rd = []
    for x in src: rd += regs_of(str(x))
    wr = regs_of(dst) if dst != "m0" else [("m0", 0)]
    return I(f"{op} {dst}, " + ", ".join(str(x) for x in src) if src else f"{op} {dst}", "salu", rd, wr)
def RAW(t, k="other", cost=1): return I(t, k, cost=cost)
def NOP(n): return I(f"s_nop {n-1}", "nop", cost=n, data=[n])
def MFMA(d, a, b, c, need=None):
    rc = regs_of(c)
    return I(f"v_mfma_f32_32x32x16_bf16 {d}, {a}, {b}, {c}", "mfma", regs_of(a) + regs_of(b) + rc, regs_of(d), cost=0, need=need, srcc=rc)
def DSR(op, dst, addr, off, tag=None):
    assert 0 <= off <= 65535, off
    return I(f"{op} {dst}, {addr} offset:{off}", "dsr", regs_of(addr), regs_of(dst), tag=tag)
def DSW(op, addr, src, off, tag=None):
    assert 0 <= off <= 65535, off
    return I(f"{op} {addr}, {src} offset:{off}", "dsw", regs_of(addr) + regs_of(src), [], tag=tag, cost=2)
def DMA(voff, srd, soff, off, stage, mods=""):
    assert 0 <= off <= 4095
    return I(f"buffer_load_dwordx4 {voff}, {srd}, {soff} offen offset:{off} lds{mods}", "dma", regs_of(voff) + regs_of(srd) + regs_of(str(soff)) + [("m0", 0)], [], cost=3, stage=stage)
def BLD(n, dst, voff, srd, soff, off, stage, mods=""):
    assert 0 <= off <= 4095
    op = {1: "buffer_load_dword", 2: "buffer_load_dwordx2", 4: "buffer_load_dwordx4"}[n]
    return I(f"{op} {dst}, {voff}, {srd}, {soff} offen offset:{off}{mods}", "vld", regs_of(voff) + regs_of(srd) + regs_of(str(soff)), regs_of(dst), cost=3, stage=stage)
def BST(n, src, voff, srd, soff, off, mods=""):
    assert 0 <= off <= 4095
    op = {1: "buffer_store_dword", 2: "buffer_store_dwordx2", 4: "buffer_store_dwordx4"}[n]
    return I(f"{op} {src}, {voff}, {srd}, {soff} offen offset:{off}{mods}", "vst", regs_of(voff) + regs_of(srd) + regs_of(str(soff)) + regs_of(src), [], cost=3, data=regs_of(src), stage="st")
def WAITV(stages):
    return I("s_waitcnt vmcnt(?)", "waitv", need=set(stages))
def WAITL(tags=None):
    return I("s_waitcnt lgkmcnt(?)", "waitl", need=tags)
def BAR(): return I("s_barrier", "bar", cost=2)
def LABEL(n): return I(f"{n}:", "label", cost=0)

class Item:
    __slots__ = ("ins", "after", "before", "dep", "lag", "gap")
    def __init__(s, ins, after=-1, before=10**9, dep=None, lag=0):
        s.ins = ins if isinstance(ins, list) else [ins]
        s.after, s.before, s.dep, s.lag, s.gap = after, before, dep, lag, None
    @property
    def cost(s): return sum(i.cost for i in s.ins)

def schedule(mf, streams, budget=6, wait_reserve=0.5):
    out = []
    pos = [0] * len(streams)
    def ready(it, g):
        if it.after > g: return False
        if it.dep is not None and (it.dep.gap is None or it.dep.gap + it.lag > g): return False
        return True
    carry = 0.0
    for g in range(-1, len(mf)):
        if g >= 0: out.append(mf[g])
        last = (g == len(mf) - 1)
        b = budget - wait_reserve + carry
        used = 0
        while True:
            best = None
            for si, st in enumerate(streams):
                if pos[si] >= len(st): continue
                it = st[pos[si]]
                if not ready(it, g) and not last: continue
                if last and it.dep is not None and it.dep.gap is None: continue
                dl = min(x.before for x in st[pos[si]:pos[si] + 40])
                must = dl <= g + 1 or last
                if not must and used + it.cost > b + 0.01: continue
                key = (0 if must else 1, dl, si)
                if best is None or key < best[0]: best = (key, si)
            if best is None: break
            si = best[1]; it = streams[si][pos[si]]; pos[si] += 1
            it.gap = g; out += it.ins; used += it.cost
        carry = min(max(b - used, -3), 0.5) if used else 0.5
        for si, st in enumerate(streams):
            if pos[si] < len(st) and min(x.before for x in st[pos[si]:pos[si] + 40]) <= g + 1 and not last:
                raise RuntimeError(f"deadline miss at gap {g}: stream {si} item {st[pos[si]].ins} after={st[pos[si]].after} dep={st[pos[si]].dep and st[pos[si]].dep.ins}")
    for si, st in enumerate(streams):
        assert pos[si] == len(st), (si, st[pos[si]].ins)
    return out

def resolve_waits(code, look=1):
    out = []
    lds = []
    done = 0
    vm = []
    vdone = 0
    tagpos = {}
    mf_idx = [i for i, x in enumerate(code) if x.k == "mfma"]
    nxt = {mf_idx[j]: mf_idx[j + 1:j + 1 + look] for j in range(len(mf_idx))}
    for i, x in enumerate(code):
        if x.k in ("dsr", "dsw"):
            lds.append(x.tag); tagpos[x.tag] = len(lds); out.append(x); continue
        if x.k in ("dma", "vld", "vst"):
            vm.append(x.stage); out.append(x); continue
        if x.k == "waitv":
            p = max([j + 1 for j, s in enumerate(vm) if s in x.need], default=0)
            if p > vdone:
                n = len(vm) - p
                assert n <= 63, n
                out.append(I(f"s_waitcnt vmcnt({n})", "wait")); vdone = p
            continue
        if x.k == "waitl":
            p = len(lds) if x.need is None else max(tagpos[t] for t in x.need)
            if p > done:
                out.append(I(f"s_waitcnt lgkmcnt({min(len(lds) - p, 15)})", "wait")); done = max(p, len(lds) - 15) if len(lds) - p > 15 else p
            continue
        if x.k == "mfma" and x.need:
            p = max(tagpos[t] for t in x.need)
            if p > done:
                for j in nxt[i]:
                    nn = code[j].need
                    if nn and all(t in tagpos for t in nn):
                        q = max(tagpos[t] for t in nn)
                        if len(lds) - q >= 4: p = max(p, q)
                n = len(lds) - p
                if n > 15: n = 15
                out.append(I(f"s_waitcnt lgkmcnt({n})", "wait")); done = len(lds) - n
        out.append(x)
    return out

def fix_hazards(code):
    out = []
    def states(x): return x.data[0] if x.k == "nop" else (0 if x.k == "label" else 1)
    VAL = ("valu", "trans", "perm", "dot", "rfl")
    nins = 0
    for x in code:
        need = 0
        dist = 0
        rd, wr = set(x.rd), set(x.wr)
        for y in reversed(out[-40:]):
            req = 0
            ywr = set(y.wr)
            if y.k == "mfma":
                if x.k == "mfma":
                    if ywr & set(x.srcc) and not (set(x.srcc) == ywr): req = max(req, 10)
                    if ywr & (rd - set(x.srcc)): req = max(req, 12)
                    if ywr & wr and not (set(x.srcc) == ywr): req = max(req, 10)
                elif x.k in VAL or x.k in ("dsr", "dsw", "vld", "vst", "dma"):
                    if ywr & (rd | wr): req = max(req, 12)
                    if x.k in VAL and set(y.srcc) & wr: req = max(req, 7)
            elif y.k in VAL:
                if x.k == "mfma" and ywr & rd: req = max(req, 2)
                if y.k == "trans" and x.k in VAL and x.k != "trans" and ywr & rd: req = max(req, 1)
                if y.k == "trans" and x.k not in VAL and ywr & rd: req = max(req, 1)
                if x.k == "perm" and ywr & (rd | wr): req = max(req, 2)
                if x.k == "rfl" and ywr & rd: req = max(req, 1)
                if y.k == "dot" and ywr & (rd | wr) and not (x.k == "dot"): req = max(req, 3)
                if y.k == "dot" and x.k == "dot" and ywr & set(x.rd[:2]): req = max(req, 3)
                sw = {r for r in ywr if r[0] == "s"}
                if sw:
                    if x.k in ("dma", "vld", "vst") and sw & rd: req = max(req, 5)
                    if x.k in VAL and sw & rd: req = max(req, 2)
                    if x.k in ("salu", "other") and sw & rd: req = max(req, 4)
            elif y.k == "salu":
                if ("m0", 0) in ywr and x.k == "dma": req = max(req, 1)
            elif y.k == "vst":
                if set(y.data) & wr and len(y.data) >= 3: req = max(req, 2)
            if req > dist: need = max(need, req - dist)
            dist += states(y)
            if dist >= 13: break
        if need:
            out.append(NOP(need)); nins += 1
        out.append(x)
    return out, nins

def text(code): return "\n".join(("" if x.k == "label" else "  ") + x.t for x in code) + "\n"
```

```python
import sys, struct
from asmlib import *
NAME = "recurrent_scan__sliding_block_cached__glu_gated_bilinear__prompt"
def f2u(x): return struct.unpack("<I", struct.pack("<f", x))[0]
LOG2E = 1.4426950408889634
CSC = LOG2E / 16.0
NKAP = 368
OPT = dict(D=6, budget=6, st_mods="", dma_gap=4)

def srd(n, lo, hi, size):
    return [S("s_mov_b32", f"s{n}", lo), S("s_mov_b32", f"s{n+1}", hi), S("s_mov_b32", f"s{n+2}", size), S("s_mov_b32", f"s{n+3}", "0x20000")]
def srd_off(n, p, soff, total):
    return [S("s_add_u32", f"s{n}", f"s{p}", soff), S("s_addc_u32", f"s{n+1}", f"s{p+1}", 0),
            S("s_sub_u32", f"s{n+2}", hex(total), soff), S("s_mov_b32", f"s{n+3}", "0x20000")]

class AReg:
    def __init__(s, v): s.v, s.base = v, 0
    def at(s, a):
        pre = []
        if not (0 <= a - s.base <= 65535):
            nb = (a // 65536) * 65536
            pre.append(V("v_add_u32", f"v{s.v}", hex((nb - s.base) & 0xffffffff), f"v{s.v}"))
            s.base = nb
        return pre, a - s.base

X0 = 32; R0 = 144; R1 = 176; QF01 = 208; CIN = 240
SA = [160, 192, 128]
RING = 224
ST = 112
SLOT = 32768
XL = 49152
def QF(ks):
    p = ks >> 2
    return (QF01 + 4 * ks) if p < 2 else ((R0 if p == 2 else R1) + 4 * (ks & 3))
def PF(kap):
    j = kap >> 1
    b = (X0 + 8 * j) if j < 14 else (SA[0] + 8 * (j - 14))
    return b + 4 * (kap & 1)
def sbuf(j): return SA[j % 3] if j < 12 else SA[j & 1]

def k1():
    c = []
    A = c.append; E = c.extend
    A(RAW("s_cmp_ge_u32 s2, 256")); A(RAW("s_cbranch_scc1 K1_END"))
    A(RAW("s_load_dwordx16 s[32:47], s[0:1], 0")); A(RAW("s_load_dwordx8 s[48:55], s[0:1], 64"))
    A(V("v_lshrrev_b32", "v26", 6, "v0")); A(V("v_and_b32", "v0", 63, "v0"))
    A(V("v_readfirstlane_b32", "s56", "v26"))
    A(S("s_and_b32", "s3", "s2", 7)); A(S("s_lshr_b32", "s4", "s2", 3)); A(S("s_and_b32", "s5", "s4", 1))
    A(S("s_lshr_b32", "s4", "s4", 1))
    A(S("s_lshl_b32", "s6", "s3", 1)); A(S("s_add_u32", "s6", "s6", "s5"))
    A(S("s_lshl_b32", "s57", "s56", 13)); A(S("s_lshl_b32", "s60", "s56", 12)); A(S("s_mul_i32", "s59", "s56", 7168))
    A(S("s_lshr_b32", "s58", "s56", 1)); A(S("s_lshl_b32", "s58", "s58", 7)); A(S("s_add_u32", "s58", "s58", "s57"))
    A(S("s_mov_b32", "s67", "0xffff0000"))
    A(V("v_lshrrev_b32", "v27", 3, "v0")); A(V("v_and_b32", "v28", 7, "v0"))
    A(V("v_lshrrev_b32", "v29", 4, "v0")); A(V("v_xor_b32", "v30", "v28", "v29"))
    A(V("v_lshlrev_b32", "v30", 4, "v30")); A(V("v_xor_b32", "v31", 64, "v30"))
    A(S("s_mul_i32", "s61", "s56", 32 * 896))
    A(V("v_mul_u32_u24", "v16", 896, "v27")); A(V("v_add_u32", "v16", "s61", "v16"))
    A(V("v_add_u32", "v1", "v16", "v30")); A(V("v_add_u32", "v2", "v16", "v31")); A(V("v_add_u32", "v2", 6144, "v2"))
    A(V("v_add_u32", "v3", 12288, "v1")); A(V("v_add_u32", "v4", 12288, "v2"))
    A(RAW("s_waitcnt lgkmcnt(0)"))
    A(S("s_mul_i32", "s61", "s4", 128 * 896)); E(srd_off(8, 32, "s61", 2048 * 896))
    for g in range(7):
        A(S("s_add_u32", "m0", "s60", XL + g * 16384)); A(S("s_mov_b32", f"s{62 + (g & 1)}", 128 * g))
        for q in range(4): A(DMA(f"v{1+q}", "s[8:11]", f"s{62 + (g & 1)}", q * 1024, f"x{g}"))
    A(RAW("s_cmp_ge_u32 s56, 2")); A(S("s_cselect_b32", "s68", "s46", "s44")); A(S("s_cselect_b32", "s69", "s47", "s45"))
    A(S("s_mul_i32", "s61", "s6", 224)); E(srd_off(12, 68, "s61", 448 * 3584))
    A(S("s_lshl_b32", "s61", "s6", 9)); E(srd_off(16, 38, "s61", 448 * 8192))
    A(S("s_lshl_b32", "s61", "s3", 20)); A(S("s_add_u32", "s61", "s61", 1536 * 512))
    E(srd_off(20, 34, "s61", 8 << 20)); E(srd_off(24, 36, "s61", 8 << 20))
    A(S("s_mul_i32", "s61", "s4", 4 * NKAP * 1024)); E(srd_off(28, 54, "s61", 64 * NKAP * 1024))
    A(S("s_lshl_b32", "s70", "s6", 14))
    A(S("s_mul_i32", "s71", "s6", 7168)); A(S("s_add_u32", "s71", "s71", 256 * 1024))
    A(S("s_and_b32", "s61", "s56", 1)); A(S("s_mul_i32", "s61", "s61", 32 * 3584))
    for q in range(7):
        A(V("v_add_u32", "v16", 64 * q, "v0")); A(V("v_mul_u32_u24", "v17", 4682, "v16")); A(V("v_lshrrev_b32", "v17", 16, "v17"))
        A(V("v_mul_u32_u24", "v18", 14, "v17")); A(V("v_sub_u32", "v18", "v16", "v18"))
        A(V("v_mul_u32_u24", "v17", 3584, "v17")); A(V("v_lshl_add_u32", "v17", "v18", 4, "v17"))
        A(V("v_add_u32", "v17", "s61", "v17")); A(V("v_subrev_u32", f"v{1+q}", (q & 3) * 1024, "v17"))
    def dma_stage(n):
        slot = (n % 5) * SLOT
        out = []
        sr = [62, 63, 64, 65]
        def grp(m0s, m0i, soff, srdn, vs, gi):
            s_ = sr[(2 * n + gi) & 3]
            first = [S("s_add_u32", "m0", m0s, m0i), S("s_mov_b32", f"s{s_}", hex(soff))]
            for k, v in enumerate(vs):
                out.append((first if k == 0 else []) + [DMA(f"v{v}", f"s[{srdn}:{srdn+3}]", f"s{s_}", k * 1024, n)])
        if n < 7:
            grp("s58", slot, n * 64 * 3584, 12, [1, 2, 3, 4], 0); grp("s58", slot + 4096, n * 64 * 3584, 12, [5, 6, 7], 1)
        elif n < 15:
            p, hs = (n - 7) >> 1, (n - 7) & 1
            so = hs * 224 * 8192 + p * 128
            grp("s59", slot, so, 16, [1, 2, 3, 4], 0); grp("s59", slot + 4096, so + 32 * 8192, 16, [1, 2, 3], 1)
        elif n < 23:
            t0 = 2 * (n - 15)
            grp("s60", slot, t0 * 16384, 20, [1, 2, 3, 4], 0); grp("s60", slot + 16384, (t0 + 1) * 16384, 20, [1, 2, 3, 4], 1)
        else:
            qd, hs = (n - 23) >> 1, (n - 23) & 1
            so = hs * 256 * 512 + qd * 128
            grp("s57", slot, so, 24, [1, 2, 3, 4], 0); grp("s57", slot + 4096, so + 32 * 512, 24, [1, 2, 3, 4], 1)
        return out
    for x in dma_stage(0): E(x)
    def stash(i, v): A(V("v_accvgpr_write_b32", f"a{ST+i}", v))
    A(V("v_lshrrev_b32", "v19", 2, "v0")); A(V("v_and_b32", "v19", 4, "v19")); A(V("v_xor_b32", "v19", "v28", "v19")); A(V("v_lshlrev_b32", "v19", 4, "v19"))
    A(S("s_mul_i32", "s61", "s56", 56 * 8192))
    A(V("v_lshl_add_u32", "v16", "v27", 13, "v19")); A(V("v_add_u32", "v16", "s61", "v16"))
    for q in range(4):
        stash(q, "v16")
        if q < 3: A(V("v_add_u32", "v16", 65536 - 1024, "v16"))
    A(S("s_lshl_b32", "s61", "s56", 7))
    A(V("v_lshlrev_b32", "v16", 9, "v27")); A(V("v_add_u32", "v16", "s61", "v16"))
    A(V("v_add_u32", "v17", "v16", "v30")); stash(4, "v17"); A(V("v_add_u32", "v17", 6144, "v17")); stash(6, "v17")
    A(V("v_add_u32", "v17", "v16", "v31")); A(V("v_add_u32", "v17", 3072, "v17")); stash(5, "v17"); A(V("v_add_u32", "v17", 6144, "v17")); stash(7, "v17")
    A(S("s_lshl_b32", "s61", "s56", 15))
    A(V("v_lshl_add_u32", "v16", "v27", 9, "v19")); A(V("v_add_u32", "v16", "s61", "v16"))
    for q in range(4):
        stash(8 + q, "v16")
        if q < 3: A(V("v_add_u32", "v16", 3072, "v16"))
    A(V("v_lshrrev_b32", "v20", 5, "v0")); A(V("v_bfe_u32", "v21", "v0", 4, 1)); A(V("v_bfe_u32", "v22", "v0", 2, 2)); A(V("v_and_b32", "v23", 3, "v0"))
    A(V("v_lshlrev_b32", "v16", 7, "v22")); A(V("v_lshrrev_b32", "v17", 1, "v22")); A(V("v_lshl_add_u32", "v16", "v17", 6, "v16")); A(V("v_lshl_add_u32", "v16", "v21", 5, "v16"))
    A(V("v_lshl_add_u32", "v17", "v20", 9, "v16")); A(V("v_lshl_add_u32", "v17", "v23", 3, "v17")); stash(18, "v17")
    A(V("v_xor_b32", "v17", 64, "v17")); stash(19, "v17")
    A(V("v_and_b32", "v18", 1, "v23")); A(V("v_lshlrev_b32", "v18", 1, "v18")); A(V("v_lshrrev_b32", "v17", 1, "v23")); A(V("v_or_b32", "v18", "v18", "v17"))
    A(V("v_lshl_add_u32", "v17", "v20", 10, "v16")); A(V("v_lshl_add_u32", "v17", "v18", 3, "v17")); stash(12, "v17")
    A(V("v_xor_b32", "v17", 64, "v17")); stash(13, "v17")
    A(V("v_lshl_add_u32", "v17", "v20", 3, "v22")); A(V("v_mul_u32_u24", "v17", 224, "v17")); A(V("v_lshl_add_u32", "v17", "v23", 3, "v17"))
    A(V("v_mul_u32_u24", "v18", 16512, "v21")); A(V("v_add_u32", "v25", "v17", "v18"))
    A(V("v_bfe_u32", "v16", "v0", 3, 2)); A(V("v_lshlrev_b32", "v16", 10, "v16")); A(V("v_lshl_add_u32", "v16", "v28", 7, "v16"))
    A(V("v_bfe_u32", "v17", "v0", 1, 3)); A(V("v_xor_b32", "v17", "v17", "v20")); A(V("v_lshl_add_u32", "v16", "v17", 4, "v16"))
    A(S("s_add_u32", "s61", "s60", XL))
    for sp in range(4):
        A(V("v_xor_b32", "v17", 32 * sp, "v16")); stash(14 + sp, "v17"); A(V("v_add_u32", f"v{8+sp}", "s61", "v17"))
    A(S("s_mul_i32", "s61", "s56", NKAP * 1024)); A(V("v_lshlrev_b32", "v24", 4, "v0")); A(V("v_add_u32", "v24", "s61", "v24"))
    A(V("v_mov_b32", "v26", "0x3f803f80"))
    for r in (12, 13, 14, 15): A(V("v_mov_b32", f"v{r}", 0))
    xa = [AReg(8 + i) for i in range(4)]
    def xread(g):
        A(WAITV([f"x{g}"]))
        for sp in range(4):
            pre, off = xa[sp].at(g * 16384); E(pre)
            A(DSR("ds_read_b128", rs("v", X0 + 16 * g + 4 * sp, 4), f"v{8+sp}", off, tag=("x", g, sp)))
    def stats(g):
        A(WAITL([("x", g, 3)]))
        for i in range(16):
            r = X0 + 16 * g + i
            A(V("v_dot2_f32_bf16", f"v{12 + (i & 1)}", f"v{r}", "v26", f"v{12 + (i & 1)}"))
            A(V("v_dot2_f32_bf16", f"v{14 + (i & 1)}", f"v{r}", f"v{r}", f"v{14 + (i & 1)}"))
    xread(0); A(WAITL()); A(BAR())
    for x in dma_stage(1): E(x)
    for gg, n in ((1, 2), (3, 3), (5, 4)):
        xread(gg); stats(gg - 1); xread(gg + 1); stats(gg); A(WAITL())
        if n == 4: A(WAITV([0]))
        A(BAR())
        for x in dma_stage(n): E(x)
    stats(6)
    A(V("v_mov_b32", "v8", "v25"))
    A(V("v_add_f32", "v12", "v12", "v13")); A(V("v_add_f32", "v14", "v14", "v15"))
    A(V("v_mov_b32", "v13", "v12")); A(V("v_mov_b32", "v15", "v14"))
    A(V("v_permlane32_swap_b32", "v12", "v13")); A(V("v_permlane32_swap_b32", "v14", "v15"))
    A(V("v_add_f32", "v12", "v12", "v13")); A(V("v_add_f32", "v14", "v14", "v15"))
    A(V("v_mul_f32", "v13", hex(f2u(1 / 448.)), "v12"))
    A(V("v_mul_f32", "v14", hex(f2u(1 / 448.)), "v14"))
    A(V("v_fma_f32", "v14", "-v13", "v13", "v14")); A(V("v_max_f32", "v14", 0, "v14"))
    A(V("v_add_f32", "v14", hex(f2u(1e-5)), "v14")); A(V("v_rsq_f32", "v12", "v14"))
    A(V("v_mul_f32", "v12", hex(f2u(CSC)), "v12"))
    A(V("v_mul_f32", "v13", "v13", "v12")); A(V("v_sub_f32", "v13", 0, "v13"))
    A(V("v_mov_b32", "v14", 0)); A(V("v_mov_b32", "v15", 0))
    pro = c

    mf = []; reads = []
    D = OPT["D"]
    rstream = []; bar = {}
    state = dict(stage=0)
    def ring(i): return RING + 4 * (i % 8)
    def add(stage, rd_fn, d, b, cc, pre=None):
        i = len(mf)
        if stage != state["stage"]:
            it = Item([WAITV([stage]), BAR()], after=i - D, before=i); rstream.append(it); bar[stage] = it; state["stage"] = stage
        if pre: rstream.append(Item(pre, after=i - D, before=i))
        ins = rd_fn(ring(i), i)
        rstream.append(Item(ins, after=i - D, before=max(i - 1, 0)))
        mf.append(MFMA(d, rs("a", ring(i), 4), b, cc, need=[x.tag for x in ins if x.k == "dsr"]))
    def tr2(ar, a0, a1):
        def f(rg, i):
            p0, o0 = ar.at(a0); p1, o1 = ar.at(a1); assert not p1
            return p0 + [DSR("ds_read_b64_tr_b16", rs("a", rg, 2), f"v{ar.v}", o0, tag=(i, 0)), DSR("ds_read_b64_tr_b16", rs("a", rg + 2, 2), f"v{ar.v}", o1, tag=(i, 1))]
        return f
    def unst(dst, i): return V("v_accvgpr_read_b32", f"v{dst}", f"a{ST+i}")
    ga = AReg(8)
    for s in range(28):
        n, ks = s >> 2, s & 3
        for tt in range(7):
            a0 = (n % 5) * SLOT + (ks >> 1) * 8192 + 16 * (ks & 1) * 224 + 32 * tt
            d = rs("a", 16 * tt, 16)
            add(n, tr2(ga, a0, a0 + 4 * 224), d, rs("v", X0 + 4 * s, 4), "0" if s == 0 else d)
    iWQ = len(mf)
    wa = [AReg(8), AReg(9)]
    for p in range(4):
        for s in range(28):
            n, ks = 7 + 2 * p + s // 14, s % 14
            for th in range(2):
                a0 = (n % 5) * SLOT + ks * 2048
                d = rs("v", (R1 if p & 1 else R0) + 16 * th, 16)
                add(n, tr2(wa[th], a0, a0 + 512), d, rs("v", X0 + 4 * s, 4), "0" if s == 0 else d,
                    pre=[unst(8, 12), unst(9, 13)] if (p, s, th) == (0, 0, 0) else None)
    iS = len(mf)
    ka = [AReg(8 + i) for i in range(4)]
    for j in range(16):
        n = 15 + (j >> 1)
        for ks in range(16):
            a0 = (n % 5) * SLOT + (j & 1) * 16384 + (ks >> 2) * 4096
            def f(rg, i, a0=a0, ks=ks):
                p0, o0 = ka[ks & 3].at(a0)
                return p0 + [DSR("ds_read_b128", rs("a", rg, 4), f"v{8 + (ks & 3)}", o0, tag=(i, 0))]
            d = rs("v", sbuf(j), 16)
            add(n, f, d, rs("v", QF(ks), 4), d if ks else ("0" if j < 2 else rs("v", CIN, 16)),
                pre=[unst(8 + i, 14 + i) for i in range(4)] if (j, ks) == (0, 0) else None)
    iPV = len(mf)
    va = [AReg(8), AReg(9)]
    def oacc(T): return (("a", 32 * ((T >> 1) & 1) + 16 * (T & 1)) if T < 6 else ("v", CIN if T == 6 else SA[1]))
    olast = {}; ofirst = {}
    for qd in range(4):
        order = [(kap, th) for kap in range(32) for th in range(2)] if qd < 3 else [(kap, th) for th in range(2) for kap in range(32)]
        for kap, th in order:
            n = 23 + 2 * qd + (kap >> 4)
            a0 = (n % 5) * SLOT + (kap & 15) * 2048
            k_, b_ = oacc(2 * qd + th); d = rs(k_, b_, 16)
            ofirst.setdefault(2 * qd + th, len(mf)); olast[2 * qd + th] = len(mf)
            add(max(n, state["stage"]), tr2(va[th], a0, a0 + 1024), d, rs("v", PF(kap), 4), d if kap else "0",
                pre=[unst(8, 18), unst(9, 19)] if (qd, kap, th) == (0, 0, 0) else None)
    dstream = []
    for n in range(5, 31):
        if n in (7, 15, 23):
            base = {7: 0, 15: 4, 23: 8}[n]
            dstream.append(Item([unst(1 + q, base + q) for q in range(4)], dep=bar[n - 3]))
        for k, ins in enumerate(dma_stage(n)):
            dstream.append(Item(ins, dep=bar[n - 3], lag=k * OPT["dma_gap"] if k else 0, before=bar[n - 1].after))
    vs = []
    def P(ins, after=-1, before=10**9):
        for x in ins: vs.append(Item(x, after=after, before=before))
    for s in range(28):
        for j in range(4):
            r = X0 + 4 * s + j; t0, t1 = (16, 17) if j & 1 else (18, 19)
            P([V("v_lshlrev_b32", f"v{t0}", 16, f"v{r}"), V("v_and_b32", f"v{t1}", "s67", f"v{r}"),
               V("v_fma_f32", f"v{t0}", f"v{t0}", "v12", "v13"), V("v_fma_f32", f"v{t1}", f"v{t1}", "v12", "v13"),
               V("v_cvt_pk_bf16_f32", f"v{r}", f"v{t0}", f"v{t1}")], before=7 * s)
    def qconv(p):
        rb = R1 if p & 1 else R0
        aft = iWQ + 56 * (p + 1) + 1
        for f in range(4):
            ks = 4 * p + f
            bef = (iWQ + 56 * (p + 2)) if p < 2 else (iS if p == 2 else iS + ks)
            P([V("v_cvt_pk_bf16_f32", f"v{QF(ks)+j}", f"v{rb + 8*f + 2*j}", f"v{rb + 8*f + 2*j + 1}") for j in range(4)], after=aft, before=min(bef, iS + ks))
    def guepi(tt):
        dq = 16 + 4 * (tt & 1)
        for j in range(4):
            P([V("v_accvgpr_read_b32", "v26", f"a{16*tt + 2*j}"), V("v_accvgpr_read_b32", "v27", f"a{16*tt + 8 + 2*j}"),
               V("v_accvgpr_read_b32", "v28", f"a{16*tt + 2*j + 1}"), V("v_accvgpr_read_b32", "v29", f"a{16*tt + 8 + 2*j + 1}"),
               V("v_mul_f32", "v26", "v26", "v27"), V("v_mul_f32", "v28", "v28", "v29"),
               V("v_cvt_pk_bf16_f32", f"v{dq+j}", "v26", "v28")], after=iWQ + 1, before=iPV)
        if tt == 4: P([S("s_add_u32", "s71", "s71", 4096)])
        P([BST(4, rs("v", dq, 4), "v24", "s[28:31]", "s71", (tt & 3) * 1024, OPT["st_mods"])])
    for tt in range(3): guepi(tt)
    qconv(0)
    for tt in range(3, 7): guepi(tt)
    qconv(1); qconv(2); qconv(3)
    for j in range(16):
        b = sbuf(j); aft = iS + 16 * j + 15 + 2
        nxt = [k for k in range(j + 1, 16) if sbuf(k) == b]
        bef = iS + 16 * nxt[0] if nxt else iPV + 4 * j
        if j == 15: bef = iPV + 4 * j
        if j == 0:
            ins = [V("v_max3_f32", "v30", f"v{b}", f"v{b+1}", f"v{b+2}")]
            for i in range(3, 15, 2): ins.append(V("v_max3_f32", "v30", "v30", f"v{b+i}", f"v{b+i+1}"))
            ins += [V("v_max_f32", "v30", "v30", f"v{b+15}"), V("v_mov_b32", "v31", "v30"), NOP(2), V("v_permlane32_swap_b32", "v30", "v31"), V("v_max_f32", "v30", "v30", "v31")]
            ins += [V("v_sub_f32", f"v{CIN+i}", 0, "v30") for i in range(16)]
            P(ins, after=aft, before=iS + 32)
        for i in range(0, 16, 2):
            ins = []
            if j < 2: ins += [V("v_sub_f32", f"v{b+i}", f"v{b+i}", "v30"), V("v_sub_f32", f"v{b+i+1}", f"v{b+i+1}", "v30")]
            ins += [V("v_exp_f32", f"v{b+i}", f"v{b+i}"), V("v_exp_f32", f"v{b+i+1}", f"v{b+i+1}"),
                    V("v_add_f32", "v14", "v14", f"v{b+i}"), V("v_add_f32", "v15", "v15", f"v{b+i+1}"),
                    V("v_cvt_pk_bf16_f32", f"v{PF(2*j) + (i >> 1)}", f"v{b+i}", f"v{b+i+1}")]
            P(ins, after=aft, before=bef)
    P([V("v_add_f32", "v14", "v14", "v15"), V("v_mov_b32", "v15", "v14"), NOP(2), V("v_permlane32_swap_b32", "v14", "v15"),
       V("v_add_f32", "v14", "v14", "v15"), V("v_rcp_f32", "v25", "v14")])
    for T in range(8):
        k_, b_ = oacc(T); aft = min(olast[T] + 2, len(mf) - 1)
        bef = ofirst[T + 4] if T + 4 < 6 else 10**9
        for e in range(2):
            dq = 16 + 4 * e
            for j in range(4):
                r = b_ + 8 * e + 2 * j; t0, t1 = (26, 27) if j & 1 else (28, 29)
                if k_ == "a":
                    ins = [V("v_accvgpr_read_b32", f"v{t0}", f"a{r}"), V("v_accvgpr_read_b32", f"v{t1}", f"a{r+1}"),
                           V("v_mul_f32", f"v{t0}", f"v{t0}", "v25"), V("v_mul_f32", f"v{t1}", f"v{t1}", "v25")]
                else:
                    ins = [V("v_mul_f32", f"v{t0}", f"v{r}", "v25"), V("v_mul_f32", f"v{t1}", f"v{r+1}", "v25")]
                P(ins + [V("v_cvt_pk_bf16_f32", f"v{dq+j}", f"v{t0}", f"v{t1}")], after=aft, before=bef)
            fi = 2 * T + e
            if fi and fi % 4 == 0: P([S("s_add_u32", "s70", "s70", 4096)])
            P([BST(4, rs("v", dq, 4), "v24", "s[28:31]", "s70", (fi & 3) * 1024, OPT["st_mods"])])
    main = schedule(mf, [rstream, dstream, vs], budget=OPT["budget"])
    code = resolve_waits(pro + main)
    code, nn = fix_hazards(code)
    code.append(LABEL("K1_END"))
    print(f"K1: {len(code)} instrs, {len(mf)} mfma, {nn} nops inserted", file=sys.stderr)
    return code

def k2():
    c = []; A = c.append; E = c.extend
    PD = 12
    A(RAW("s_cmp_ge_u32 s2, 224")); A(RAW("s_cbranch_scc1 K2_END"))
    A(RAW("s_load_dwordx16 s[32:47], s[0:1], 0")); A(RAW("s_load_dwordx8 s[48:55], s[0:1], 64"))
    A(V("v_lshrrev_b32", "v26", 6, "v0")); A(V("v_and_b32", "v0", 63, "v0"))
    A(V("v_readfirstlane_b32", "s56", "v26"))
    A(S("s_and_b32", "s3", "s2", 7)); A(S("s_lshr_b32", "s4", "s2", 3))
    A(S("s_mul_i32", "s5", "s4", 9363)); A(S("s_lshr_b32", "s5", "s5", 16))
    A(S("s_mul_i32", "s6", "s5", 7)); A(S("s_sub_u32", "s6", "s4", "s6"))
    A(S("s_lshl_b32", "s3", "s3", 2)); A(S("s_add_u32", "s5", "s5", "s3"))
    A(S("s_mul_i32", "s57", "s56", PD * 2048))
    A(V("v_lshrrev_b32", "v27", 3, "v0")); A(V("v_and_b32", "v28", 7, "v0"))
    A(V("v_lshrrev_b32", "v19", 2, "v0")); A(V("v_and_b32", "v19", 4, "v19")); A(V("v_xor_b32", "v19", "v28", "v19")); A(V("v_lshlrev_b32", "v19", 4, "v19"))
    A(V("v_mul_u32_u24", "v1", 896, "v27")); A(V("v_add_u32", "v1", "v1", "v19"))
    for q in range(1, 4): A(V("v_add_u32", f"v{1+q}", 6144, f"v{q}"))
    A(V("v_lshlrev_b32", "v5", 4, "v0")); A(V("v_add_u32", "v6", NKAP * 1024, "v5"))
    A(S("s_mul_i32", "s62", "s56", 28 * 16 * 896))
    A(S("s_mul_i32", "s63", "s56", 28 * 1024)); A(S("s_add_u32", "s63", "s63", 256 * 1024))
    A(RAW("s_waitcnt lgkmcnt(0)"))
    A(S("s_lshl_b32", "s61", "s6", 7)); E(srd_off(8, 48, "s61", 1792 * 896)); E(srd_off(12, 40, "s61", 4096 * 896))
    A(S("s_mul_i32", "s61", "s5", 2 * NKAP * 1024)); E(srd_off(16, 54, "s61", 64 * NKAP * 1024))
    BR = 64
    def issue(j):
        if j >= 46: return
        if j == 14:
            A(S("s_mul_i32", "s62", "s56", 64 * 16 * 896)); A(S("s_lshl_b32", "s63", "s56", 16))
        A(S("s_add_u32", "m0", "s57", (j % (PD // 2)) * 4096))
        sr = "s[8:11]" if j < 14 else "s[12:15]"
        for q in range(4): A(DMA(f"v{1+q}", sr, "s62", q * 1024, ("a", j)))
        for u in range(2):
            st = 2 * j + u
            for rb in range(2):
                A(BLD(4, rs("v", BR + (st % PD) * 8 + 4 * rb, 4), f"v{5+rb}", "s[16:19]", "s63", u * 1024, ("b", j)))
        A(S("s_add_u32", "s62", "s62", 32 * 896)); A(S("s_add_u32", "s63", "s63", 2048))
    for j in range(PD // 2): issue(j)
    E(srd(20, "s32", "s33", hex(2048 * 896))); E(srd(24, "s50", "s51", hex(2048 * 896)))
    A(V("v_lshrrev_b32", "v20", 5, "v0")); A(V("v_bfe_u32", "v21", "v0", 4, 1)); A(V("v_bfe_u32", "v22", "v0", 2, 2)); A(V("v_and_b32", "v23", 3, "v0"))
    A(V("v_lshlrev_b32", "v16", 7, "v22")); A(V("v_lshrrev_b32", "v17", 1, "v22")); A(V("v_lshl_add_u32", "v16", "v17", 6, "v16"))
    A(V("v_lshl_add_u32", "v16", "v20", 9, "v16")); A(V("v_and_b32", "v17", 1, "v23")); A(V("v_lshl_add_u32", "v16", "v17", 5, "v16"))
    A(V("v_lshl_add_u32", "v16", "v21", 4, "v16")); A(V("v_lshrrev_b32", "v17", 1, "v23")); A(V("v_lshl_add_u32", "v16", "v17", 3, "v16"))
    A(V("v_xor_b32", "v17", 64, "v16")); A(V("v_add_u32", "v8", "s57", "v16")); A(V("v_add_u32", "v9", "s57", "v17"))
    RB = 4 * PD * 2048
    A(S("s_lshl_b32", "s61", "s56", 14)); A(S("s_add_u32", "s61", "s61", RB)); A(V("v_add_u32", "v10", "s61", "v5"))
    A(S("s_lshl_b32", "s61", "s56", 12)); A(S("s_add_u32", "s61", "s61", RB)); A(V("v_add_u32", "v11", "s61", "v5"))
    A(S("s_lshr_b32", "s61", "s56", 1)); A(S("s_lshl_b32", "s61", "s61", 5)); A(S("s_lshl_b32", "s64", "s5", 6)); A(S("s_add_u32", "s61", "s61", "s64"))
    A(S("s_mul_i32", "s61", "s61", 896)); A(S("s_lshl_b32", "s64", "s6", 7)); A(S("s_add_u32", "s61", "s61", "s64"))
    A(S("s_and_b32", "s64", "s56", 1)); A(S("s_lshl_b32", "s64", "s64", 6)); A(S("s_add_u32", "s61", "s61", "s64"))
    A(V("v_and_b32", "v16", 31, "v0")); A(V("v_mul_u32_u24", "v16", 896, "v16")); A(V("v_lshl_add_u32", "v16", "v20", 5, "v16")); A(V("v_add_u32", "v7", "s61", "v16"))
    AF = 32
    XR = 48; G = 160; PR = 176
    A(BLD(4, rs("v", XR, 4), "v7", "s[20:23]", 0, 0, "x")); A(BLD(4, rs("v", XR + 4, 4), "v7", "s[20:23]", 0, 16, "x"))
    def rd(st):
        A(WAITV([("a", st >> 1)]))
        for cb in range(2):
            r = AF + (st & 1) * 8 + 4 * cb; o = (st % PD) * 2048
            A(DSR("ds_read_b64_tr_b16", rs("v", r, 2), f"v{8+cb}", o, tag=(st, cb, 0))); A(DSR("ds_read_b64_tr_b16", rs("v", r + 2, 2), f"v{8+cb}", o + 1024, tag=(st, cb, 1)))
    def dump(base, tg):
        for t in range(4):
            for q in range(4): A(DSW("ds_write_b128", "v10", rs("a", base + 16 * t + 4 * q, 4), t * 4096 + q * 1024, tag=(tg, t, q)))
        A(WAITL()); A(BAR())
    def gather(tg, dst):
        for sw in range(4):
            for q in range(4): A(DSR("ds_read_b128", rs("v", PR + 16 * sw + 4 * q, 4), "v11", sw * 16384 + q * 1024, tag=(tg, "r", sw, q)))
        A(WAITL())
        for i in range(16):
            A(V("v_add_f32", f"v{PR+i}", f"v{PR+i}", f"v{PR+16+i}")); A(V("v_add_f32", f"v{PR+32+i}", f"v{PR+32+i}", f"v{PR+48+i}"))
        for i in range(16): A(V("v_add_f32", f"v{dst+i}", f"v{PR+i}", f"v{PR+32+i}"))
    rd(0)
    for st in range(92):
        if st + 1 < 92: rd(st + 1)
        A(WAITV([("b", st >> 1)]))
        ab = 0 if st < 28 else 64
        for rb in range(2):
            for cb in range(2):
                d = rs("a", ab + 16 * (2 * rb + cb), 16)
                A(MFMA(d, rs("v", AF + (st & 1) * 8 + 4 * cb, 4), rs("v", BR + (st % PD) * 8 + 4 * rb, 4), "0" if st in (0, 28) else d, need=[(st, cb, 0), (st, cb, 1)]))
        if st & 1: issue((st >> 1) + PD // 2)
        if st == 29: dump(0, "f")
        if st == 31:
            gather("f", G)
            for i in range(16):
                r = f"v{G+i}"; t = f"v{PR+i}"
                A(V("v_mul_f32", r, hex(f2u(1.0 / (CSC * CSC))), r)); A(V("v_mul_f32", t, hex(f2u(-LOG2E)), r)); A(V("v_exp_f32", t, t))
            for i in range(16):
                t = f"v{PR+i}"; A(V("v_add_f32", t, 1.0, t)); A(V("v_rcp_f32", t, t))
            for i in range(16): A(V("v_mul_f32", f"v{G+i}", f"v{G+i}", f"v{PR+i}"))
            A(BAR())
    dump(64, "s")
    gather("s", PR)
    A(WAITV(["x"]))
    for j in range(8):
        A(V("v_lshlrev_b32", "v16", 16, f"v{XR+j}")); A(V("v_and_b32", "v17", "0xffff0000", f"v{XR+j}"))
        A(V("v_fma_f32", "v16", f"v{PR+2*j}", f"v{G+2*j}", "v16")); A(V("v_fma_f32", "v17", f"v{PR+2*j+1}", f"v{G+2*j+1}", "v17"))
        A(V("v_cvt_pk_bf16_f32", f"v{XR+j}", "v16", "v17"))
    A(BST(4, rs("v", XR, 4), "v7", "s[24:27]", 0, 0)); A(BST(4, rs("v", XR + 4, 4), "v7", "s[24:27]", 0, 16))
    code = resolve_waits(c, look=3)
    code, nn = fix_hazards(code)
    code.append(LABEL("K2_END"))
    print(f"K2: {len(code)} instrs, {nn} nops", file=sys.stderr)
    return code

def kd(name, vg, acc):
    return f""".p2align 6
.amdhsa_kernel {name}
  .amdhsa_next_free_vgpr {vg}
  .amdhsa_next_free_sgpr 102
  .amdhsa_accum_offset {acc}
  .amdhsa_group_segment_fixed_size 0
  .amdhsa_kernarg_size 96
  .amdhsa_user_sgpr_count 2
  .amdhsa_user_sgpr_kernarg_segment_ptr 1
  .amdhsa_system_sgpr_workgroup_id_x 1
.end_amdhsa_kernel
"""
def build():
    ref = open(f"cdna_kernels/{NAME}.s.ref").read().split("\n")
    head = [l for l in ref if l.startswith(";") and "@launch" not in l and "Override" not in l and "grid=ceil" not in l]
    s = "\n".join(head) + "\n"
    s += "; @launch kernel=attn_kernel grid=(256,1,1) block=(256,1,1) lds=163840\n"
    s += "; @launch kernel=proj_kernel grid=(224,1,1) block=(256,1,1) lds=163840\n"
    s += '.amdgcn_target "amdgcn-amd-amdhsa--gfx950"\n.text\n'
    for nm, fn in (("attn_kernel", k1), ("proj_kernel", k2)):
        s += f".globl {nm}\n.p2align 8\n.type {nm},@function\n{nm}:\n" + text(fn()) + "  s_endpgm\n"
    s += '.section .rodata,"a"\n' + kd("attn_kernel", 512, 256) + kd("proj_kernel", 384, 256)
    return s
if __name__ == "__main__":
    for a in sys.argv[2:]:
        k, v = a.split("="); OPT[k] = type(OPT[k])(v)
    open(sys.argv[1], "w").write(build())
```

```python
import sys, struct
from asmlib import *
NAME = "recurrent_scan__sliding_block_cached__glu_gated_bilinear__prompt"
def f2u(x): return struct.unpack("<I", struct.pack("<f", x))[0]
LOG2E = 1.4426950408889634
CSC = LOG2E / 16.0
NKAP = 368
OPT = dict(D=6, budget=6, st_mods="", dma_gap=4, stamp=0, touch=1, touch2=1)
def STAMP(i):
    return [I(f"s_memtime s[{72+2*i}:{73+2*i}]", "other", cost=1)] if OPT["stamp"] else []
def STAMP_OUT(n, base):
    if not OPT["stamp"]: return []
    o = [RAW("s_waitcnt lgkmcnt(0) vmcnt(0)"), I(f"s_memtime s[{72+2*n}:{73+2*n}]", "other"), RAW("s_waitcnt lgkmcnt(0)")]
    o += [S("s_add_u32", "s4", "s54", hex((32 << 20) + base)), S("s_addc_u32", "s5", "s55", 0), S("s_mov_b32", "s6", 1 << 20), S("s_mov_b32", "s7", "0x20000")]
    o += [S("s_lshl_b32", "s3", "s2", 8), S("s_lshl_b32", "s61", "s56", 6), S("s_add_u32", "s3", "s3", "s61"), V("v_mov_b32", "v1", "s3")]
    for i in range(n + 1):
        o += [V("v_mov_b32", "v2", f"s{72+2*i}"), BST(1, "v2", "v1", "s[4:7]", 0, 4 * i)]
    return o


def srd(n, lo, hi, size):
    return [S("s_mov_b32", f"s{n}", lo), S("s_mov_b32", f"s{n+1}", hi), S("s_mov_b32", f"s{n+2}", size), S("s_mov_b32", f"s{n+3}", "0x20000")]
def srd_off(n, p, soff, total):
    return [S("s_add_u32", f"s{n}", f"s{p}", soff), S("s_addc_u32", f"s{n+1}", f"s{p+1}", 0),
            S("s_sub_u32", f"s{n+2}", hex(total), soff), S("s_mov_b32", f"s{n+3}", "0x20000")]

class AReg:
    def __init__(s, v): s.v, s.base = v, 0
    def at(s, a):
        pre = []
        if not (0 <= a - s.base <= 65535):
            nb = (a // 65536) * 65536
            pre.append(V("v_add_u32", f"v{s.v}", hex((nb - s.base) & 0xffffffff), f"v{s.v}"))
            s.base = nb
        return pre, a - s.base

X0 = 32; R0 = 144; R1 = 176; QF01 = 208; CIN = 240
SA = [160, 192, 128]
RING = 224
ST = 112
SLOT = 32768
XL = 49152
def QF(ks):
    p = ks >> 2
    return (QF01 + 4 * ks) if p < 2 else ((R0 if p == 2 else R1) + 4 * (ks & 3))
def PF(kap):
    j = kap >> 1
    b = (X0 + 8 * j) if j < 14 else (SA[0] + 8 * (j - 14))
    return b + 4 * (kap & 1)
def sbuf(j): return SA[j % 3] if j < 12 else SA[j & 1]

def k1():
    c = []
    A = c.append; E = c.extend
    A(RAW("s_cmp_ge_u32 s2, 256")); A(RAW("s_cbranch_scc1 K1_END"))
    E(STAMP(0))
    A(RAW("s_load_dwordx16 s[32:47], s[0:1], 0")); A(RAW("s_load_dwordx8 s[48:55], s[0:1], 64"))
    A(V("v_lshrrev_b32", "v26", 6, "v0")); A(V("v_and_b32", "v0", 63, "v0"))
    A(V("v_readfirstlane_b32", "s56", "v26"))
    A(S("s_and_b32", "s7", "s2", 3)); A(S("s_lshr_b32", "s5", "s2", 3))
    A(S("s_and_b32", "s6", "s5", 3)); A(S("s_lshl_b32", "s3", "s7", 2)); A(S("s_add_u32", "s6", "s6", "s3"))
    A(S("s_lshr_b32", "s3", "s6", 1))
    A(S("s_and_b32", "s4", "s2", 4)); A(S("s_lshl_b32", "s4", "s4", 1)); A(S("s_lshr_b32", "s61", "s5", 2)); A(S("s_add_u32", "s4", "s4", "s61"))
    A(S("s_lshl_b32", "s57", "s56", 13)); A(S("s_lshl_b32", "s60", "s56", 12)); A(S("s_mul_i32", "s59", "s56", 7168))
    A(S("s_lshr_b32", "s58", "s56", 1)); A(S("s_lshl_b32", "s58", "s58", 7)); A(S("s_add_u32", "s58", "s58", "s57"))
    A(S("s_mov_b32", "s67", "0xffff0000"))
    A(V("v_lshrrev_b32", "v27", 3, "v0")); A(V("v_and_b32", "v28", 7, "v0"))
    A(V("v_lshrrev_b32", "v29", 4, "v0")); A(V("v_xor_b32", "v30", "v28", "v29"))
    A(V("v_lshlrev_b32", "v30", 4, "v30")); A(V("v_xor_b32", "v31", 64, "v30"))
    A(S("s_mul_i32", "s61", "s56", 32 * 896))
    A(V("v_mul_u32_u24", "v16", 896, "v27")); A(V("v_add_u32", "v16", "s61", "v16"))
    A(V("v_add_u32", "v1", "v16", "v30")); A(V("v_add_u32", "v2", "v16", "v31")); A(V("v_add_u32", "v2", 6144, "v2"))
    A(V("v_add_u32", "v3", 12288, "v1")); A(V("v_add_u32", "v4", 12288, "v2"))
    A(RAW("s_waitcnt lgkmcnt(0)"))
    A(S("s_mul_i32", "s61", "s4", 128 * 896)); E(srd_off(8, 32, "s61", 2048 * 896))
    for g in range(7):
        A(S("s_add_u32", "m0", "s60", XL + g * 16384)); A(S("s_mov_b32", f"s{62 + (g & 1)}", 128 * g))
        for q in range(4): A(DMA(f"v{1+q}", "s[8:11]", f"s{62 + (g & 1)}", q * 1024, f"x{g}"))
    E(STAMP(1))
    A(RAW("s_cmp_ge_u32 s56, 2")); A(S("s_cselect_b32", "s68", "s46", "s44")); A(S("s_cselect_b32", "s69", "s47", "s45"))
    A(S("s_mul_i32", "s61", "s6", 224)); E(srd_off(12, 68, "s61", 448 * 3584))
    A(S("s_lshl_b32", "s61", "s6", 9)); E(srd_off(16, 38, "s61", 448 * 8192))
    A(S("s_lshl_b32", "s61", "s3", 20)); A(S("s_add_u32", "s61", "s61", 1536 * 512))
    E(srd_off(20, 34, "s61", 8 << 20)); E(srd_off(24, 36, "s61", 8 << 20))
    A(S("s_mul_i32", "s61", "s4", 4 * NKAP * 1024)); E(srd_off(28, 54, "s61", 64 * NKAP * 1024))
    A(S("s_lshl_b32", "s70", "s6", 14))
    A(S("s_mul_i32", "s71", "s6", 7168)); A(S("s_add_u32", "s71", "s71", 256 * 1024))
    A(S("s_and_b32", "s61", "s56", 1)); A(S("s_mul_i32", "s61", "s61", 32 * 3584))
    for q in range(7):
        A(V("v_add_u32", "v16", 64 * q, "v0")); A(V("v_mul_u32_u24", "v17", 4682, "v16")); A(V("v_lshrrev_b32", "v17", 16, "v17"))
        A(V("v_mul_u32_u24", "v18", 14, "v17")); A(V("v_sub_u32", "v18", "v16", "v18"))
        A(V("v_mul_u32_u24", "v17", 3584, "v17")); A(V("v_lshl_add_u32", "v17", "v18", 4, "v17"))
        A(V("v_add_u32", "v17", "s61", "v17")); A(V("v_subrev_u32", f"v{1+q}", (q & 3) * 1024, "v17"))
    def dma_stage(n):
        slot = (n % 5) * SLOT
        out = []
        sr = [62, 63, 64, 65]
        def grp(m0s, m0i, soff, srdn, vs, gi):
            s_ = sr[(2 * n + gi) & 3]
            first = [S("s_add_u32", "m0", m0s, m0i), S("s_mov_b32", f"s{s_}", hex(soff))]
            for k, v in enumerate(vs):
                out.append((first if k == 0 else []) + [DMA(f"v{v}", f"s[{srdn}:{srdn+3}]", f"s{s_}", k * 1024, n)])
        if n < 7:
            grp("s58", slot, n * 64 * 3584, 12, [1, 2, 3, 4], 0); grp("s58", slot + 4096, n * 64 * 3584, 12, [5, 6, 7], 1)
        elif n < 15:
            p, hs = (n - 7) >> 1, (n - 7) & 1
            so = hs * 224 * 8192 + p * 128
            grp("s59", slot, so, 16, [1, 2, 3, 4], 0); grp("s59", slot + 4096, so + 32 * 8192, 16, [1, 2, 3], 1)
        elif n < 23:
            t0 = 2 * (n - 15)
            grp("s60", slot, t0 * 16384, 20, [1, 2, 3, 4], 0); grp("s60", slot + 16384, (t0 + 1) * 16384, 20, [1, 2, 3, 4], 1)
        else:
            qd, hs = (n - 23) >> 1, (n - 23) & 1
            so = hs * 256 * 512 + qd * 128
            grp("s57", slot, so, 24, [1, 2, 3, 4], 0); grp("s57", slot + 4096, so + 32 * 512, 24, [1, 2, 3, 4], 1)
        return out
    for x in dma_stage(0): E(x)
    if OPT["touch"]:
        A(S("s_lshl_b32", "s61", "s5", 2)); A(S("s_add_u32", "s61", "s61", "s56"))
        A(RAW("s_cmp_ge_u32 s61, 64"))
        A(S("s_cselect_b32", "s92", "s46", "s44")); A(S("s_cselect_b32", "s93", "s47", "s45")); A(S("s_mov_b32", "s94", 448 * 3584)); A(S("s_mov_b32", "s95", "0x20000"))
        A(S("s_cselect_b32", "s96", "s36", "s34")); A(S("s_cselect_b32", "s97", "s37", "s35")); A(S("s_mov_b32", "s98", 8 << 20)); A(S("s_mov_b32", "s99", "0x20000"))
        A(S("s_and_b32", "s66", "s61", 63)); A(S("s_lshl_b32", "s66", "s66", 6)); A(V("v_add_u32", "v16", "s66", "v0"))
        A(V("v_lshrrev_b32", "v17", 3, "v16")); A(V("v_mul_u32_u24", "v17", 3584, "v17")); A(V("v_lshl_add_u32", "v17", "v28", 7, "v17"))
        A(S("s_mul_i32", "s66", "s7", 896))
        A(BLD(1, "v255", "v17", "s[92:95]", "s66", 0, "t"))
        A(S("s_lshl_b32", "s66", "s61", 6)); A(V("v_add_u32", "v17", "s66", "v0"))
        A(V("v_lshrrev_b32", "v18", 4, "v17")); A(V("v_and_b32", "v17", 15, "v17")); A(V("v_lshlrev_b32", "v17", 7, "v17")); A(V("v_lshl_add_u32", "v17", "v18", 13, "v17"))
        E(srd(92, "s38", "s39", 448 * 8192)); A(S("s_lshl_b32", "s66", "s7", 11))
        A(BLD(1, "v255", "v17", "s[92:95]", "s66", 0, "t"))
        A(V("v_lshrrev_b32", "v17", 11, "v16")); A(V("v_and_b32", "v16", 2047, "v16")); A(V("v_lshlrev_b32", "v16", 7, "v16")); A(V("v_lshl_add_u32", "v17", "v17", 20, "v16"))
        A(S("s_lshl_b32", "s66", "s7", 21)); A(S("s_add_u32", "s66", "s66", 1536 * 512))
        A(BLD(1, "v255", "v17", "s[96:99]", "s66", 0, "t"))
    def stash(i, v): A(V("v_accvgpr_write_b32", f"a{ST+i}", v))
    A(V("v_lshrrev_b32", "v19", 2, "v0")); A(V("v_and_b32", "v19", 4, "v19")); A(V("v_xor_b32", "v19", "v28", "v19")); A(V("v_lshlrev_b32", "v19", 4, "v19"))
    A(S("s_mul_i32", "s61", "s56", 56 * 8192))
    A(V("v_lshl_add_u32", "v16", "v27", 13, "v19")); A(V("v_add_u32", "v16", "s61", "v16"))
    for q in range(4):
        stash(q, "v16")
        if q < 3: A(V("v_add_u32", "v16", 65536 - 1024, "v16"))
    A(S("s_lshl_b32", "s61", "s56", 7))
    A(V("v_lshlrev_b32", "v16", 9, "v27")); A(V("v_add_u32", "v16", "s61", "v16"))
    A(V("v_add_u32", "v17", "v16", "v30")); stash(4, "v17"); A(V("v_add_u32", "v17", 6144, "v17")); stash(6, "v17")
    A(V("v_add_u32", "v17", "v16", "v31")); A(V("v_add_u32", "v17", 3072, "v17")); stash(5, "v17"); A(V("v_add_u32", "v17", 6144, "v17")); stash(7, "v17")
    A(S("s_lshl_b32", "s61", "s56", 15))
    A(V("v_lshl_add_u32", "v16", "v27", 9, "v19")); A(V("v_add_u32", "v16", "s61", "v16"))
    for q in range(4):
        stash(8 + q, "v16")
        if q < 3: A(V("v_add_u32", "v16", 3072, "v16"))
    A(V("v_lshrrev_b32", "v20", 5, "v0")); A(V("v_bfe_u32", "v21", "v0", 4, 1)); A(V("v_bfe_u32", "v22", "v0", 2, 2)); A(V("v_and_b32", "v23", 3, "v0"))
    A(V("v_lshlrev_b32", "v16", 7, "v22")); A(V("v_lshrrev_b32", "v17", 1, "v22")); A(V("v_lshl_add_u32", "v16", "v17", 6, "v16")); A(V("v_lshl_add_u32", "v16", "v21", 5, "v16"))
    A(V("v_lshl_add_u32", "v17", "v20", 9, "v16")); A(V("v_lshl_add_u32", "v17", "v23", 3, "v17")); stash(18, "v17")
    A(V("v_xor_b32", "v17", 64, "v17")); stash(19, "v17")
    A(V("v_and_b32", "v18", 1, "v23")); A(V("v_lshlrev_b32", "v18", 1, "v18")); A(V("v_lshrrev_b32", "v17", 1, "v23")); A(V("v_or_b32", "v18", "v18", "v17"))
    A(V("v_lshl_add_u32", "v17", "v20", 10, "v16")); A(V("v_lshl_add_u32", "v17", "v18", 3, "v17")); stash(12, "v17")
    A(V("v_xor_b32", "v17", 64, "v17")); stash(13, "v17")
    A(V("v_lshl_add_u32", "v17", "v20", 3, "v22")); A(V("v_mul_u32_u24", "v17", 224, "v17")); A(V("v_lshl_add_u32", "v17", "v23", 3, "v17"))
    A(V("v_mul_u32_u24", "v18", 16512, "v21")); A(V("v_add_u32", "v25", "v17", "v18"))
    A(V("v_bfe_u32", "v16", "v0", 3, 2)); A(V("v_lshlrev_b32", "v16", 10, "v16")); A(V("v_lshl_add_u32", "v16", "v28", 7, "v16"))
    A(V("v_bfe_u32", "v17", "v0", 1, 3)); A(V("v_xor_b32", "v17", "v17", "v20")); A(V("v_lshl_add_u32", "v16", "v17", 4, "v16"))
    A(S("s_add_u32", "s61", "s60", XL))
    for sp in range(4):
        A(V("v_xor_b32", "v17", 32 * sp, "v16")); stash(14 + sp, "v17"); A(V("v_add_u32", f"v{8+sp}", "s61", "v17"))
    A(S("s_mul_i32", "s61", "s56", NKAP * 1024)); A(V("v_lshlrev_b32", "v24", 4, "v0")); A(V("v_add_u32", "v24", "s61", "v24"))
    A(V("v_mov_b32", "v26", "0x3f803f80"))
    for r in (12, 13, 14, 15): A(V("v_mov_b32", f"v{r}", 0))
    xa = [AReg(8 + i) for i in range(4)]
    def xread(g):
        A(WAITV([f"x{g}"]))
        for sp in range(4):
            pre, off = xa[sp].at(g * 16384); E(pre)
            A(DSR("ds_read_b128", rs("v", X0 + 16 * g + 4 * sp, 4), f"v{8+sp}", off, tag=("x", g, sp)))
    def stats(g):
        A(WAITL([("x", g, 3)]))
        for i in range(16):
            r = X0 + 16 * g + i
            A(V("v_dot2_f32_bf16", f"v{12 + (i & 1)}", f"v{r}", "v26", f"v{12 + (i & 1)}"))
            A(V("v_dot2_f32_bf16", f"v{14 + (i & 1)}", f"v{r}", f"v{r}", f"v{14 + (i & 1)}"))
    xread(0); A(WAITL()); A(BAR()); E(STAMP(2))
    for x in dma_stage(1): E(x)
    for gg, n in ((1, 2), (3, 3), (5, 4)):
        xread(gg); stats(gg - 1); xread(gg + 1); stats(gg); A(WAITL())
        if n == 4: A(WAITV([0]))
        A(BAR())
        for x in dma_stage(n): E(x)
    E(STAMP(3))
    stats(6)
    A(V("v_mov_b32", "v8", "v25"))
    A(V("v_add_f32", "v12", "v12", "v13")); A(V("v_add_f32", "v14", "v14", "v15"))
    A(V("v_mov_b32", "v13", "v12")); A(V("v_mov_b32", "v15", "v14"))
    A(V("v_permlane32_swap_b32", "v12", "v13")); A(V("v_permlane32_swap_b32", "v14", "v15"))
    A(V("v_add_f32", "v12", "v12", "v13")); A(V("v_add_f32", "v14", "v14", "v15"))
    A(V("v_mul_f32", "v13", hex(f2u(1 / 448.)), "v12"))
    A(V("v_mul_f32", "v14", hex(f2u(1 / 448.)), "v14"))
    A(V("v_fma_f32", "v14", "-v13", "v13", "v14")); A(V("v_max_f32", "v14", 0, "v14"))
    A(V("v_add_f32", "v14", hex(f2u(1e-5)), "v14")); A(V("v_rsq_f32", "v12", "v14"))
    A(V("v_mul_f32", "v12", hex(f2u(CSC)), "v12"))
    A(V("v_mul_f32", "v13", "v13", "v12")); A(V("v_sub_f32", "v13", 0, "v13"))
    A(V("v_mov_b32", "v14", 0)); A(V("v_mov_b32", "v15", 0))
    pro = c

    mf = []; reads = []
    D = OPT["D"]
    rstream = []; bar = {}
    state = dict(stage=0)
    def ring(i): return RING + 4 * (i % 8)
    def add(stage, rd_fn, d, b, cc, pre=None):
        i = len(mf)
        if stage != state["stage"]:
            it = Item([WAITV([stage]), BAR()], after=i - D, before=i); rstream.append(it); bar[stage] = it; state["stage"] = stage
        if pre: rstream.append(Item(pre, after=i - D, before=i))
        ins = rd_fn(ring(i), i)
        rstream.append(Item(ins, after=i - D, before=max(i - 1, 0)))
        mf.append(MFMA(d, rs("a", ring(i), 4), b, cc, need=[x.tag for x in ins if x.k == "dsr"]))
    def tr2(ar, a0, a1):
        def f(rg, i):
            p0, o0 = ar.at(a0); p1, o1 = ar.at(a1); assert not p1
            return p0 + [DSR("ds_read_b64_tr_b16", rs("a", rg, 2), f"v{ar.v}", o0, tag=(i, 0)), DSR("ds_read_b64_tr_b16", rs("a", rg + 2, 2), f"v{ar.v}", o1, tag=(i, 1))]
        return f
    def unst(dst, i): return V("v_accvgpr_read_b32", f"v{dst}", f"a{ST+i}")
    ga = AReg(8)
    for s in range(28):
        n, ks = s >> 2, s & 3
        for tt in range(7):
            a0 = (n % 5) * SLOT + (ks >> 1) * 8192 + 16 * (ks & 1) * 224 + 32 * tt
            d = rs("a", 16 * tt, 16)
            add(n, tr2(ga, a0, a0 + 4 * 224), d, rs("v", X0 + 4 * s, 4), "0" if s == 0 else d)
    iWQ = len(mf)
    wa = [AReg(8), AReg(9)]
    for p in range(4):
        for s in range(28):
            n, ks = 7 + 2 * p + s // 14, s % 14
            for th in range(2):
                a0 = (n % 5) * SLOT + ks * 2048
                d = rs("v", (R1 if p & 1 else R0) + 16 * th, 16)
                add(n, tr2(wa[th], a0, a0 + 512), d, rs("v", X0 + 4 * s, 4), "0" if s == 0 else d,
                    pre=[unst(8, 12), unst(9, 13)] if (p, s, th) == (0, 0, 0) else None)
    iS = len(mf)
    ka = [AReg(8 + i) for i in range(4)]
    for j in range(16):
        n = 15 + (j >> 1)
        for ks in range(16):
            a0 = (n % 5) * SLOT + (j & 1) * 16384 + (ks >> 2) * 4096
            def f(rg, i, a0=a0, ks=ks):
                p0, o0 = ka[ks & 3].at(a0)
                return p0 + [DSR("ds_read_b128", rs("a", rg, 4), f"v{8 + (ks & 3)}", o0, tag=(i, 0))]
            d = rs("v", sbuf(j), 16)
            add(n, f, d, rs("v", QF(ks), 4), d if ks else ("0" if j < 2 else rs("v", CIN, 16)),
                pre=[unst(8 + i, 14 + i) for i in range(4)] if (j, ks) == (0, 0) else None)
    iPV = len(mf)
    va = [AReg(8), AReg(9)]
    def oacc(T): return (("a", 32 * ((T >> 1) & 1) + 16 * (T & 1)) if T < 6 else ("v", CIN if T == 6 else SA[1]))
    olast = {}; ofirst = {}
    for qd in range(4):
        order = [(kap, th) for kap in range(32) for th in range(2)] if qd < 3 else [(kap, th) for th in range(2) for kap in range(32)]
        for kap, th in order:
            n = 23 + 2 * qd + (kap >> 4)
            a0 = (n % 5) * SLOT + (kap & 15) * 2048
            k_, b_ = oacc(2 * qd + th); d = rs(k_, b_, 16)
            ofirst.setdefault(2 * qd + th, len(mf)); olast[2 * qd + th] = len(mf)
            add(max(n, state["stage"]), tr2(va[th], a0, a0 + 1024), d, rs("v", PF(kap), 4), d if kap else "0",
                pre=[unst(8, 18), unst(9, 19)] if (qd, kap, th) == (0, 0, 0) else None)
    dstream = []
    for n in range(5, 31):
        if n in (7, 15, 23):
            base = {7: 0, 15: 4, 23: 8}[n]
            dstream.append(Item([unst(1 + q, base + q) for q in range(4)], dep=bar[n - 3]))
        for k, ins in enumerate(dma_stage(n)):
            dstream.append(Item(ins, dep=bar[n - 3], lag=k * OPT["dma_gap"] if k else 0, before=bar[n - 1].after))
    vs = []
    def P(ins, after=-1, before=10**9):
        for x in ins: vs.append(Item(x, after=after, before=before))
    for s in range(28):
        for j in range(4):
            r = X0 + 4 * s + j; t0, t1 = (16, 17) if j & 1 else (18, 19)
            P([V("v_lshlrev_b32", f"v{t0}", 16, f"v{r}"), V("v_and_b32", f"v{t1}", "s67", f"v{r}"),
               V("v_fma_f32", f"v{t0}", f"v{t0}", "v12", "v13"), V("v_fma_f32", f"v{t1}", f"v{t1}", "v12", "v13"),
               V("v_cvt_pk_bf16_f32", f"v{r}", f"v{t0}", f"v{t1}")], before=7 * s)
    def qconv(p):
        rb = R1 if p & 1 else R0
        aft = iWQ + 56 * (p + 1) + 1
        for f in range(4):
            ks = 4 * p + f
            bef = (iWQ + 56 * (p + 2)) if p < 2 else (iS if p == 2 else iS + ks)
            P([V("v_cvt_pk_bf16_f32", f"v{QF(ks)+j}", f"v{rb + 8*f + 2*j}", f"v{rb + 8*f + 2*j + 1}") for j in range(4)], after=aft, before=min(bef, iS + ks))
    def guepi(tt):
        dq = 16 + 4 * (tt & 1)
        for j in range(4):
            P([V("v_accvgpr_read_b32", "v26", f"a{16*tt + 2*j}"), V("v_accvgpr_read_b32", "v27", f"a{16*tt + 8 + 2*j}"),
               V("v_accvgpr_read_b32", "v28", f"a{16*tt + 2*j + 1}"), V("v_accvgpr_read_b32", "v29", f"a{16*tt + 8 + 2*j + 1}"),
               V("v_mul_f32", "v26", "v26", "v27"), V("v_mul_f32", "v28", "v28", "v29"),
               V("v_cvt_pk_bf16_f32", f"v{dq+j}", "v26", "v28")], after=iWQ + 1, before=iPV)
        if tt == 4: P([S("s_add_u32", "s71", "s71", 4096)])
        P([BST(4, rs("v", dq, 4), "v24", "s[28:31]", "s71", (tt & 3) * 1024, OPT["st_mods"])])
    if OPT["touch2"]:
        P(srd(92, "s40", "s41", 4096 * 896) + srd(96, "s48", "s49", 1792 * 896) +
          [S("s_lshl_b32", "s66", "s2", 2), S("s_add_u32", "s66", "s66", "s56"), S("s_sub_u32", "s61", 1023, "s66"), S("s_lshl_b32", "s66", "s66", 13), S("s_lshl_b32", "s61", "s61", 13),
           V("v_lshlrev_b32", "v254", 7, "v0"), BLD(1, "v255", "v254", "s[92:95]", "s66", 0, "t"), BLD(1, "v255", "v254", "s[96:99]", "s61", 0, "t")], after=iWQ + 1)
    for tt in range(3): guepi(tt)
    qconv(0)
    for tt in range(3, 7): guepi(tt)
    qconv(1); qconv(2); qconv(3)
    for j in range(16):
        b = sbuf(j); aft = iS + 16 * j + 15 + 2
        nxt = [k for k in range(j + 1, 16) if sbuf(k) == b]
        bef = iS + 16 * nxt[0] if nxt else iPV + 4 * j
        if j == 15: bef = iPV + 4 * j
        if j == 0:
            ins = [V("v_max3_f32", "v30", f"v{b}", f"v{b+1}", f"v{b+2}")]
            for i in range(3, 15, 2): ins.append(V("v_max3_f32", "v30", "v30", f"v{b+i}", f"v{b+i+1}"))
            ins += [V("v_max_f32", "v30", "v30", f"v{b+15}"), V("v_mov_b32", "v31", "v30"), NOP(2), V("v_permlane32_swap_b32", "v30", "v31"), V("v_max_f32", "v30", "v30", "v31")]
            ins += [V("v_sub_f32", f"v{CIN+i}", 0, "v30") for i in range(16)]
            P(ins, after=aft, before=iS + 32)
        for i in range(0, 16, 2):
            ins = []
            if j < 2: ins += [V("v_sub_f32", f"v{b+i}", f"v{b+i}", "v30"), V("v_sub_f32", f"v{b+i+1}", f"v{b+i+1}", "v30")]
            ins += [V("v_exp_f32", f"v{b+i}", f"v{b+i}"), V("v_exp_f32", f"v{b+i+1}", f"v{b+i+1}"),
                    V("v_add_f32", "v14", "v14", f"v{b+i}"), V("v_add_f32", "v15", "v15", f"v{b+i+1}"),
                    V("v_cvt_pk_bf16_f32", f"v{PF(2*j) + (i >> 1)}", f"v{b+i}", f"v{b+i+1}")]
            P(ins, after=aft, before=bef)
    P([V("v_add_f32", "v14", "v14", "v15"), V("v_mov_b32", "v15", "v14"), NOP(2), V("v_permlane32_swap_b32", "v14", "v15"),
       V("v_add_f32", "v14", "v14", "v15"), V("v_rcp_f32", "v25", "v14")])
    for T in range(8):
        k_, b_ = oacc(T); aft = min(olast[T] + 2, len(mf) - 1)
        bef = ofirst[T + 4] if T + 4 < 6 else 10**9
        for e in range(2):
            dq = 16 + 4 * e
            for j in range(4):
                r = b_ + 8 * e + 2 * j; t0, t1 = (26, 27) if j & 1 else (28, 29)
                if k_ == "a":
                    ins = [V("v_accvgpr_read_b32", f"v{t0}", f"a{r}"), V("v_accvgpr_read_b32", f"v{t1}", f"a{r+1}"),
                           V("v_mul_f32", f"v{t0}", f"v{t0}", "v25"), V("v_mul_f32", f"v{t1}", f"v{t1}", "v25")]
                else:
                    ins = [V("v_mul_f32", f"v{t0}", f"v{r}", "v25"), V("v_mul_f32", f"v{t1}", f"v{r+1}", "v25")]
                P(ins + [V("v_cvt_pk_bf16_f32", f"v{dq+j}", f"v{t0}", f"v{t1}")], after=aft, before=bef)
            fi = 2 * T + e
            if fi and fi % 4 == 0: P([S("s_add_u32", "s70", "s70", 4096)])
            P([BST(4, rs("v", dq, 4), "v24", "s[28:31]", "s70", (fi & 3) * 1024, OPT["st_mods"])])
    ss = [Item(STAMP(4 + k), after=ix, before=ix + 1) for k, ix in enumerate([0, iWQ, iS, iPV, len(mf) - 2])] if OPT["stamp"] else []
    main = schedule(mf, [rstream, dstream, vs, ss], budget=OPT["budget"])
    code = resolve_waits(pro + main + STAMP_OUT(9, 0))
    code, nn = fix_hazards(code)
    code.append(LABEL("K1_END"))
    print(f"K1: {len(code)} instrs, {len(mf)} mfma, {nn} nops inserted", file=sys.stderr)
    return code

def k2():
    c = []; A = c.append; E = c.extend
    PD = 12
    A(RAW("s_cmp_ge_u32 s2, 224")); A(RAW("s_cbranch_scc1 K2_END"))
    E(STAMP(0))
    A(RAW("s_load_dwordx16 s[32:47], s[0:1], 0")); A(RAW("s_load_dwordx8 s[48:55], s[0:1], 64"))
    A(V("v_lshrrev_b32", "v26", 6, "v0")); A(V("v_and_b32", "v0", 63, "v0"))
    A(V("v_readfirstlane_b32", "s56", "v26"))
    A(S("s_and_b32", "s3", "s2", 7)); A(S("s_lshr_b32", "s4", "s2", 3))
    A(S("s_mul_i32", "s5", "s4", 9363)); A(S("s_lshr_b32", "s5", "s5", 16))
    A(S("s_mul_i32", "s6", "s5", 7)); A(S("s_sub_u32", "s6", "s4", "s6"))
    A(S("s_lshl_b32", "s3", "s3", 2)); A(S("s_add_u32", "s5", "s5", "s3"))
    A(S("s_mul_i32", "s57", "s56", PD * 2048))
    A(V("v_lshrrev_b32", "v27", 3, "v0")); A(V("v_and_b32", "v28", 7, "v0"))
    A(V("v_lshrrev_b32", "v19", 2, "v0")); A(V("v_and_b32", "v19", 4, "v19")); A(V("v_xor_b32", "v19", "v28", "v19")); A(V("v_lshlrev_b32", "v19", 4, "v19"))
    A(V("v_mul_u32_u24", "v1", 896, "v27")); A(V("v_add_u32", "v1", "v1", "v19"))
    for q in range(1, 4): A(V("v_add_u32", f"v{1+q}", 6144, f"v{q}"))
    A(V("v_lshlrev_b32", "v5", 4, "v0")); A(V("v_add_u32", "v6", NKAP * 1024, "v5"))
    A(S("s_mul_i32", "s62", "s56", 28 * 16 * 896))
    A(S("s_mul_i32", "s63", "s56", 28 * 1024)); A(S("s_add_u32", "s63", "s63", 256 * 1024))
    A(RAW("s_waitcnt lgkmcnt(0)"))
    A(S("s_lshl_b32", "s61", "s6", 7)); E(srd_off(8, 48, "s61", 1792 * 896)); E(srd_off(12, 40, "s61", 4096 * 896))
    A(S("s_mul_i32", "s61", "s5", 2 * NKAP * 1024)); E(srd_off(16, 54, "s61", 64 * NKAP * 1024))
    BR = 64
    def issue(j):
        if j >= 46: return
        if j == 14:
            A(S("s_mul_i32", "s62", "s56", 64 * 16 * 896)); A(S("s_lshl_b32", "s63", "s56", 16))
        A(S("s_add_u32", "m0", "s57", (j % (PD // 2)) * 4096))
        sr = "s[8:11]" if j < 14 else "s[12:15]"
        for q in range(4): A(DMA(f"v{1+q}", sr, "s62", q * 1024, ("a", j)))
        for u in range(2):
            st = 2 * j + u
            for rb in range(2):
                A(BLD(4, rs("v", BR + (st % PD) * 8 + 4 * rb, 4), f"v{5+rb}", "s[16:19]", "s63", u * 1024, ("b", j)))
        A(S("s_add_u32", "s62", "s62", 32 * 896)); A(S("s_add_u32", "s63", "s63", 2048))
    for j in range(PD // 2): issue(j)
    E(srd(20, "s32", "s33", hex(2048 * 896))); E(srd(24, "s50", "s51", hex(2048 * 896)))
    A(V("v_lshrrev_b32", "v20", 5, "v0")); A(V("v_bfe_u32", "v21", "v0", 4, 1)); A(V("v_bfe_u32", "v22", "v0", 2, 2)); A(V("v_and_b32", "v23", 3, "v0"))
    A(V("v_lshlrev_b32", "v16", 7, "v22")); A(V("v_lshrrev_b32", "v17", 1, "v22")); A(V("v_lshl_add_u32", "v16", "v17", 6, "v16"))
    A(V("v_lshl_add_u32", "v16", "v20", 9, "v16")); A(V("v_and_b32", "v17", 1, "v23")); A(V("v_lshl_add_u32", "v16", "v17", 5, "v16"))
    A(V("v_lshl_add_u32", "v16", "v21", 4, "v16")); A(V("v_lshrrev_b32", "v17", 1, "v23")); A(V("v_lshl_add_u32", "v16", "v17", 3, "v16"))
    A(V("v_xor_b32", "v17", 64, "v16")); A(V("v_add_u32", "v8", "s57", "v16")); A(V("v_add_u32", "v9", "s57", "v17"))
    RB = 4 * PD * 2048
    A(S("s_lshl_b32", "s61", "s56", 14)); A(S("s_add_u32", "s61", "s61", RB)); A(V("v_add_u32", "v10", "s61", "v5"))
    A(S("s_lshl_b32", "s61", "s56", 12)); A(S("s_add_u32", "s61", "s61", RB)); A(V("v_add_u32", "v11", "s61", "v5"))
    A(S("s_lshr_b32", "s61", "s56", 1)); A(S("s_lshl_b32", "s61", "s61", 5)); A(S("s_lshl_b32", "s64", "s5", 6)); A(S("s_add_u32", "s61", "s61", "s64"))
    A(S("s_mul_i32", "s61", "s61", 896)); A(S("s_lshl_b32", "s64", "s6", 7)); A(S("s_add_u32", "s61", "s61", "s64"))
    A(S("s_and_b32", "s64", "s56", 1)); A(S("s_lshl_b32", "s64", "s64", 6)); A(S("s_add_u32", "s61", "s61", "s64"))
    A(V("v_and_b32", "v16", 31, "v0")); A(V("v_mul_u32_u24", "v16", 896, "v16")); A(V("v_lshl_add_u32", "v16", "v20", 5, "v16")); A(V("v_add_u32", "v7", "s61", "v16"))
    AF = 32
    XR = 48; G = 160; PR = 176
    A(BLD(4, rs("v", XR, 4), "v7", "s[20:23]", 0, 0, "x")); A(BLD(4, rs("v", XR + 4, 4), "v7", "s[20:23]", 0, 16, "x"))
    def rd(st):
        A(WAITV([("a", st >> 1)]))
        for cb in range(2):
            r = AF + (st & 1) * 8 + 4 * cb; o = (st % PD) * 2048
            A(DSR("ds_read_b64_tr_b16", rs("v", r, 2), f"v{8+cb}", o, tag=(st, cb, 0))); A(DSR("ds_read_b64_tr_b16", rs("v", r + 2, 2), f"v{8+cb}", o + 1024, tag=(st, cb, 1)))
    def dump(base, tg):
        for t in range(4):
            for q in range(4): A(DSW("ds_write_b128", "v10", rs("a", base + 16 * t + 4 * q, 4), t * 4096 + q * 1024, tag=(tg, t, q)))
        A(WAITL()); A(BAR())
    def gather(tg, dst):
        for sw in range(4):
            for q in range(4): A(DSR("ds_read_b128", rs("v", PR + 16 * sw + 4 * q, 4), "v11", sw * 16384 + q * 1024, tag=(tg, "r", sw, q)))
        A(WAITL())
        for i in range(16):
            A(V("v_add_f32", f"v{PR+i}", f"v{PR+i}", f"v{PR+16+i}")); A(V("v_add_f32", f"v{PR+32+i}", f"v{PR+32+i}", f"v{PR+48+i}"))
        for i in range(16): A(V("v_add_f32", f"v{dst+i}", f"v{PR+i}", f"v{PR+32+i}"))
    E(STAMP(1))
    rd(0)
    for st in range(92):
        if st in (1, 28, 60): E(STAMP({1: 2, 28: 3, 60: 4}[st]))
        if st + 1 < 92: rd(st + 1)
        A(WAITV([("b", st >> 1)]))
        ab = 0 if st < 28 else 64
        for rb in range(2):
            for cb in range(2):
                d = rs("a", ab + 16 * (2 * rb + cb), 16)
                A(MFMA(d, rs("v", AF + (st & 1) * 8 + 4 * cb, 4), rs("v", BR + (st % PD) * 8 + 4 * rb, 4), "0" if st in (0, 28) else d, need=[(st, cb, 0), (st, cb, 1)]))
        if st & 1: issue((st >> 1) + PD // 2)
        if st == 29: dump(0, "f")
        if st == 31:
            gather("f", G)
            for i in range(16):
                r = f"v{G+i}"; t = f"v{PR+i}"
                A(V("v_mul_f32", r, hex(f2u(1.0 / (CSC * CSC))), r)); A(V("v_mul_f32", t, hex(f2u(-LOG2E)), r)); A(V("v_exp_f32", t, t))
            for i in range(16):
                t = f"v{PR+i}"; A(V("v_add_f32", t, 1.0, t)); A(V("v_rcp_f32", t, t))
            for i in range(16): A(V("v_mul_f32", f"v{G+i}", f"v{G+i}", f"v{PR+i}"))
            A(BAR())
    E(STAMP(5))
    dump(64, "s")
    E(STAMP(6))
    gather("s", PR)
    A(WAITV(["x"]))
    for j in range(8):
        A(V("v_lshlrev_b32", "v16", 16, f"v{XR+j}")); A(V("v_and_b32", "v17", "0xffff0000", f"v{XR+j}"))
        A(V("v_fma_f32", "v16", f"v{PR+2*j}", f"v{G+2*j}", "v16")); A(V("v_fma_f32", "v17", f"v{PR+2*j+1}", f"v{G+2*j+1}", "v17"))
        A(V("v_cvt_pk_bf16_f32", f"v{XR+j}", "v16", "v17"))
    A(BST(4, rs("v", XR, 4), "v7", "s[24:27]", 0, 0)); A(BST(4, rs("v", XR + 4, 4), "v7", "s[24:27]", 0, 16))
    E(STAMP_OUT(7, 65536 * 4))
    code = resolve_waits(c, look=3)
    code, nn = fix_hazards(code)
    code.append(LABEL("K2_END"))
    print(f"K2: {len(code)} instrs, {nn} nops", file=sys.stderr)
    return code

def kd(name, vg, acc):
    return f""".p2align 6
.amdhsa_kernel {name}
  .amdhsa_next_free_vgpr {vg}
  .amdhsa_next_free_sgpr 102
  .amdhsa_accum_offset {acc}
  .amdhsa_group_segment_fixed_size 0
  .amdhsa_kernarg_size 96
  .amdhsa_user_sgpr_count 2
  .amdhsa_user_sgpr_kernarg_segment_ptr 1
  .amdhsa_system_sgpr_workgroup_id_x 1
.end_amdhsa_kernel
"""
def build():
    ref = open(f"cdna_kernels/{NAME}.s.ref").read().split("\n")
    head = [l for l in ref if l.startswith(";") and "@launch" not in l and "Override" not in l and "grid=ceil" not in l]
    s = "\n".join(head) + "\n"
    s += "; @launch kernel=attn_kernel grid=(256,1,1) block=(256,1,1) lds=163840\n"
    s += "; @launch kernel=proj_kernel grid=(224,1,1) block=(256,1,1) lds=163840\n"
    s += '.amdgcn_target "amdgcn-amd-amdhsa--gfx950"\n.text\n'
    for nm, fn in (("attn_kernel", k1), ("proj_kernel", k2)):
        s += f".globl {nm}\n.p2align 8\n.type {nm},@function\n{nm}:\n" + text(fn()) + "  s_endpgm\n"
    s += '.section .rodata,"a"\n' + kd("attn_kernel", 512, 256) + kd("proj_kernel", 384, 256)
    return s
if __name__ == "__main__":
    for a in sys.argv[2:]:
        k, v = a.split("="); OPT[k] = type(OPT[k])(v)
    open(sys.argv[1], "w").write(build())
```

```python
import re

def R(kind, base, n=1):
    return [(kind, base + i) for i in range(n)]
def rs(kind, base, n=1):
    return f"{kind}{base}" if n == 1 else f"{kind}[{base}:{base+n-1}]"

class I:
    __slots__ = ("t", "k", "rd", "wr", "cost", "tag", "need", "srcc", "stage", "data")
    def __init__(s, t, k, rd=(), wr=(), cost=1, tag=None, need=None, srcc=(), stage=None, data=()):
        s.t, s.k, s.rd, s.wr, s.cost, s.tag, s.need, s.srcc, s.stage, s.data = t, k, list(rd), list(wr), cost, tag, need, list(srcc), stage, list(data)
    def __repr__(s): return s.t

_opre = re.compile(r"^(-?)(?:abs\()?([vas])(\d+|\[(\d+):(\d+)\])\)?$")
def regs_of(op):
    m = _opre.match(op.strip())
    if not m: return []
    k = m.group(2)
    if m.group(4) is not None: return R(k, int(m.group(4)), int(m.group(5)) - int(m.group(4)) + 1)
    return [(k, int(m.group(3)))]

TRANS = ("v_exp_f32", "v_rcp_f32", "v_rsq_f32", "v_log_f32", "v_sqrt_f32")
def V(op, dst, *src, mods=""):
    rd = []
    for x in src: rd += regs_of(str(x))
    wr = regs_of(dst)
    if op.startswith("v_fmac") or op.startswith("v_dot2c"): rd += wr
    if op.startswith("v_permlane32_swap"):
        wr = wr + regs_of(src[0]); rd += regs_of(dst)
    k = "trans" if op in TRANS else ("perm" if "permlane" in op else ("dot" if "dot2" in op else "valu"))
    if op.startswith("v_cmp"): wr = wr + ([("s", 106), ("s", 107)] if dst == "vcc" else [])
    if op.startswith("v_cndmask") and len(src) == 3 and src[2] == "vcc": rd += [("s", 106), ("s", 107)]
    if op in ("v_readfirstlane_b32", "v_readlane_b32"): k = "rfl"
    return I(f"{op} {dst}, " + ", ".join(str(x) for x in src) + mods, k, rd, wr, cost=2 if k == "trans" else 1)
def S(op, dst, *src):
    rd = []
    for x in src: rd += regs_of(str(x))
    wr = regs_of(dst) if dst != "m0" else [("m0", 0)]
    return I(f"{op} {dst}, " + ", ".join(str(x) for x in src) if src else f"{op} {dst}", "salu", rd, wr)
def RAW(t, k="other", cost=1): return I(t, k, cost=cost)
def NOP(n): return I(f"s_nop {n-1}", "nop", cost=n, data=[n])
def MFMA(d, a, b, c, need=None):
    rc = regs_of(c)
    return I(f"v_mfma_f32_32x32x16_bf16 {d}, {a}, {b}, {c}", "mfma", regs_of(a) + regs_of(b) + rc, regs_of(d), cost=0, need=need, srcc=rc)
def DSR(op, dst, addr, off, tag=None):
    assert 0 <= off <= 65535, off
    return I(f"{op} {dst}, {addr} offset:{off}", "dsr", regs_of(addr), regs_of(dst), tag=tag)
def DSW(op, addr, src, off, tag=None):
    assert 0 <= off <= 65535, off
    return I(f"{op} {addr}, {src} offset:{off}", "dsw", regs_of(addr) + regs_of(src), [], tag=tag, cost=2)
def DMA(voff, srd, soff, off, stage, mods=""):
    assert 0 <= off <= 4095
    return I(f"buffer_load_dwordx4 {voff}, {srd}, {soff} offen offset:{off}{mods} lds", "dma", regs_of(voff) + regs_of(srd) + regs_of(str(soff)) + [("m0", 0)], [], cost=3, stage=stage)
def BLD(n, dst, voff, srd, soff, off, stage, mods=""):
    assert 0 <= off <= 4095
    op = {1: "buffer_load_dword", 2: "buffer_load_dwordx2", 4: "buffer_load_dwordx4"}[n]
    return I(f"{op} {dst}, {voff}, {srd}, {soff} offen offset:{off}{mods}", "vld", regs_of(voff) + regs_of(srd) + regs_of(str(soff)), regs_of(dst), cost=3, stage=stage)
def BST(n, src, voff, srd, soff, off, mods=""):
    assert 0 <= off <= 4095
    op = {1: "buffer_store_dword", 2: "buffer_store_dwordx2", 4: "buffer_store_dwordx4"}[n]
    return I(f"{op} {src}, {voff}, {srd}, {soff} offen offset:{off}{mods}", "vst", regs_of(voff) + regs_of(srd) + regs_of(str(soff)) + regs_of(src), [], cost=3, data=regs_of(src), stage="st")
def WAITV(stages):
    return I("s_waitcnt vmcnt(?)", "waitv", need=set(stages))
def WAITL(tags=None):
    return I("s_waitcnt lgkmcnt(?)", "waitl", need=tags)
def BAR(): return I("s_barrier", "bar", cost=2)
def LABEL(n): return I(f"{n}:", "label", cost=0)

class Item:
    __slots__ = ("ins", "after", "before", "dep", "lag", "gap")
    def __init__(s, ins, after=-1, before=10**9, dep=None, lag=0):
        s.ins = ins if isinstance(ins, list) else [ins]
        s.after, s.before, s.dep, s.lag, s.gap = after, before, dep, lag, None
    @property
    def cost(s): return sum(i.cost for i in s.ins)

def schedule(mf, streams, budget=6, wait_reserve=0.5):
    out = []
    pos = [0] * len(streams)
    def ready(it, g):
        if it.after > g: return False
        if it.dep is not None and (it.dep.gap is None or it.dep.gap + it.lag > g): return False
        return True
    carry = 0.0
    for g in range(-1, len(mf)):
        if g >= 0: out.append(mf[g])
        last = (g == len(mf) - 1)
        b = budget - wait_reserve + carry
        used = 0
        while True:
            best = None
            for si, st in enumerate(streams):
                if pos[si] >= len(st): continue
                it = st[pos[si]]
                if not ready(it, g) and not last: continue
                if last and it.dep is not None and it.dep.gap is None: continue
                dl = min(x.before for x in st[pos[si]:pos[si] + 40])
                must = dl <= g + 1 or last
                if not must and used + it.cost > b + 0.01: continue
                key = (0 if must else 1, dl, si)
                if best is None or key < best[0]: best = (key, si)
            if best is None: break
            si = best[1]; it = streams[si][pos[si]]; pos[si] += 1
            it.gap = g; out += it.ins; used += it.cost
        carry = min(max(b - used, -3), 0.5) if used else 0.5
        for si, st in enumerate(streams):
            if pos[si] < len(st) and min(x.before for x in st[pos[si]:pos[si] + 40]) <= g + 1 and not last:
                raise RuntimeError(f"deadline miss at gap {g}: stream {si} item {st[pos[si]].ins} after={st[pos[si]].after} dep={st[pos[si]].dep and st[pos[si]].dep.ins}")
    for si, st in enumerate(streams):
        assert pos[si] == len(st), (si, st[pos[si]].ins)
    return out

def resolve_waits(code, look=1):
    out = []
    lds = []
    done = 0
    vm = []
    vdone = 0
    tagpos = {}
    mf_idx = [i for i, x in enumerate(code) if x.k == "mfma"]
    nxt = {mf_idx[j]: mf_idx[j + 1:j + 1 + look] for j in range(len(mf_idx))}
    for i, x in enumerate(code):
        if x.k in ("dsr", "dsw"):
            lds.append(x.tag); tagpos[x.tag] = len(lds); out.append(x); continue
        if x.k in ("dma", "vld", "vst"):
            vm.append(x.stage); out.append(x); continue
        if x.k == "waitv":
            p = max([j + 1 for j, s in enumerate(vm) if s in x.need], default=0)
            if p > vdone:
                n = len(vm) - p
                assert n <= 63, n
                out.append(I(f"s_waitcnt vmcnt({n})", "wait")); vdone = p
            continue
        if x.k == "waitl":
            p = len(lds) if x.need is None else max(tagpos[t] for t in x.need)
            if p > done:
                out.append(I(f"s_waitcnt lgkmcnt({min(len(lds) - p, 15)})", "wait")); done = max(p, len(lds) - 15) if len(lds) - p > 15 else p
            continue
        if x.k == "mfma" and x.need:
            p = max(tagpos[t] for t in x.need)
            if p > done:
                for j in nxt[i]:
                    nn = code[j].need
                    if nn and all(t in tagpos for t in nn):
                        q = max(tagpos[t] for t in nn)
                        if len(lds) - q >= 4: p = max(p, q)
                n = len(lds) - p
                if n > 15: n = 15
                out.append(I(f"s_waitcnt lgkmcnt({n})", "wait")); done = len(lds) - n
        out.append(x)
    return out

def fix_hazards(code):
    out = []
    def states(x): return x.data[0] if x.k == "nop" else (0 if x.k == "label" else 1)
    VAL = ("valu", "trans", "perm", "dot", "rfl")
    nins = 0
    for x in code:
        need = 0
        dist = 0
        rd, wr = set(x.rd), set(x.wr)
        for y in reversed(out[-40:]):
            req = 0
            ywr = set(y.wr)
            if y.k == "mfma":
                if x.k == "mfma":
                    if ywr & set(x.srcc) and not (set(x.srcc) == ywr): req = max(req, 10)
                    if ywr & (rd - set(x.srcc)): req = max(req, 12)
                    if ywr & wr and not (set(x.srcc) == ywr): req = max(req, 10)
                elif x.k in VAL or x.k in ("dsr", "dsw", "vld", "vst", "dma"):
                    if ywr & (rd | wr): req = max(req, 12)
                    if x.k in VAL and set(y.srcc) & wr: req = max(req, 7)
            elif y.k in VAL:
                if x.k == "mfma" and ywr & rd: req = max(req, 2)
                if y.k == "trans" and x.k in VAL and x.k != "trans" and ywr & rd: req = max(req, 1)
                if y.k == "trans" and x.k not in VAL and ywr & rd: req = max(req, 1)
                if x.k == "perm" and ywr & (rd | wr): req = max(req, 2)
                if x.k == "rfl" and ywr & rd: req = max(req, 1)
                if y.k == "dot" and ywr & (rd | wr) and not (x.k == "dot"): req = max(req, 3)
                if y.k == "dot" and x.k == "dot" and ywr & set(x.rd[:2]): req = max(req, 3)
                sw = {r for r in ywr if r[0] == "s"}
                if sw:
                    if x.k in ("dma", "vld", "vst") and sw & rd: req = max(req, 5)
                    if x.k in VAL and sw & rd: req = max(req, 2)
                    if x.k in ("salu", "other") and sw & rd: req = max(req, 4)
            elif y.k == "salu":
                if ("m0", 0) in ywr and x.k == "dma": req = max(req, 1)
            elif y.k == "vst":
                if set(y.data) & wr and len(y.data) >= 3: req = max(req, 2)
            if req > dist: need = max(need, req - dist)
            dist += states(y)
            if dist >= 13: break
        if need:
            out.append(NOP(need)); nins += 1
        out.append(x)
    return out, nins

def text(code): return "\n".join(("" if x.k == "label" else "  ") + x.t for x in code) + "\n"

def check_scc(code):
    last = None
    for x in code:
        op = x.t.split()[0]
        if op == "s_addc_u32":
            d = int(x.t.split()[1].strip(",")[1:])
            assert last and last.startswith(f"s_add_u32 s{d-1},"), (last, x.t)
        if op in ("s_cselect_b32", "s_cbranch_scc0", "s_cbranch_scc1"):
            assert last and last.startswith("s_cmp"), (last, x.t)
        if op.startswith("s_") and op not in ("s_mov_b32", "s_mul_i32", "s_cselect_b32", "s_waitcnt", "s_barrier", "s_nop", "s_memtime", "s_memrealtime", "s_mov_b64", "s_setprio", "s_sleep", "s_getpc_b64") \
           and not op.startswith("s_load") and not op.startswith("s_cbranch") and not op.startswith("s_branch"):
            last = x.t
```

```python
import sys, struct
from asmlib import *
NAME = "recurrent_scan__sliding_block_cached__glu_gated_bilinear__prompt"
def f2u(x): return struct.unpack("<I", struct.pack("<f", x))[0]
LOG2E = 1.4426950408889634
CSC = LOG2E / 16.0
NKAP = 368
OPT = dict(D=6, budget=6, st_mods=" sc1", dma_gap=4, stamp=0, touch=1, touch2=1, thr=30, tat=0, s2at=5, k2a="", k2b="", k1d="", tp="q0:30,q1:80,q2:130,q3:180,k0:234,k1:310,v0:390,v1:560,d0:600,o0:690,o1:740")
def STAMP(i):
    return ([I(f"s_memtime s[{72+2*i}:{73+2*i}]", "other", cost=1)] + ([I("s_memrealtime s[100:101]", "other")] if i == 0 else [])) if OPT["stamp"] else []
def STAMP_OUT(n, base):
    if not OPT["stamp"]: return []
    o = [RAW("s_waitcnt lgkmcnt(0) vmcnt(0)"), I(f"s_memtime s[{72+2*n}:{73+2*n}]", "other"), I("s_memrealtime s[62:63]", "other"), RAW("s_waitcnt lgkmcnt(0)")]
    o += [S("s_add_u32", "s4", "s54", hex((32 << 20) + base)), S("s_addc_u32", "s5", "s55", 0), S("s_mov_b32", "s6", 1 << 20), S("s_mov_b32", "s7", "0x20000")]
    o += [S("s_lshl_b32", "s3", "s2", 8), S("s_lshl_b32", "s61", "s56", 6), S("s_add_u32", "s3", "s3", "s61"), V("v_mov_b32", "v1", "s3")]
    for i in range(n + 1):
        o += [V("v_mov_b32", "v2", f"s{72+2*i}"), BST(1, "v2", "v1", "s[4:7]", 0, 4 * i)]
    o += [V("v_mov_b32", "v2", "s100"), BST(1, "v2", "v1", "s[4:7]", 0, 56), V("v_mov_b32", "v2", "s62"), BST(1, "v2", "v1", "s[4:7]", 0, 60)]
    return o


def srd(n, lo, hi, size):
    return [S("s_mov_b32", f"s{n}", lo), S("s_mov_b32", f"s{n+1}", hi), S("s_mov_b32", f"s{n+2}", size), S("s_mov_b32", f"s{n+3}", "0x20000")]
def srd_off(n, p, soff, total):
    return [S("s_add_u32", f"s{n}", f"s{p}", soff), S("s_addc_u32", f"s{n+1}", f"s{p+1}", 0),
            S("s_sub_u32", f"s{n+2}", hex(total), soff), S("s_mov_b32", f"s{n+3}", "0x20000")]

class AReg:
    def __init__(s, v): s.v, s.base = v, 0
    def at(s, a):
        pre = []
        if not (0 <= a - s.base <= 65535):
            nb = (a // 65536) * 65536
            pre.append(V("v_add_u32", f"v{s.v}", hex((nb - s.base) & 0xffffffff), f"v{s.v}"))
            s.base = nb
        return pre, a - s.base

X0 = 32; R0 = 144; R1 = 176; QF01 = 208; CIN = 240
SA = [160, 192, 128]
RING = 224
ST = 112
SLOT = 32768
def XOFF(g): return (1 + (g >> 1)) * SLOT + (g & 1) * 4096
def QF(ks):
    p = ks >> 2
    return (QF01 + 4 * ks) if p < 2 else ((R0 if p == 2 else R1) + 4 * (ks & 3))
def PF(kap):
    j = kap >> 1
    b = (X0 + 8 * j) if j < 14 else (SA[0] + 8 * (j - 14))
    return b + 4 * (kap & 1)
def sbuf(j): return SA[j % 3] if j < 12 else SA[j & 1]

def k1_slow():
    c = []; A = c.append; E = c.extend
    W = lambda t: A(RAW(t))
    KF = 32; SB = 96; PB = 112; VF = 120
    W("s_waitcnt vmcnt(0) lgkmcnt(0)"); A(NOP(8)); A(NOP(8))
    A(V("v_and_b32", "v1", 31, "v0")); A(V("v_lshrrev_b32", "v2", 5, "v0"))
    A(V("v_lshlrev_b32", "v3", 9, "v1")); A(V("v_lshl_add_u32", "v3", "v2", 4, "v3"))
    A(V("v_lshlrev_b32", "v4", 11, "v2")); A(V("v_lshl_add_u32", "v4", "v1", 1, "v4"))
    A(V("v_add_u32", "v5", 4096, "v4"))
    A(V("v_mov_b32", "v30", "0xff800000")); A(V("v_mov_b32", "v14", 0))
    for i in range(128): A(V("v_accvgpr_write_b32", f"a{i}", 0))
    def stile():
        for ks in range(16): A(BLD(4, rs("v", KF + 4 * ks, 4), "v3", "s[20:23]", "s62", 32 * ks, "z"))
        W("s_waitcnt vmcnt(0)")
        for ks in range(16): A(MFMA(rs("v", SB, 16), rs("v", KF + 4 * ks, 4), rs("v", QF(ks), 4), rs("v", SB, 16) if ks else "0"))
        A(NOP(8)); A(NOP(8))
    A(S("s_mov_b32", "s62", 0)); A(LABEL("K1_SL1")); A(NOP(8))
    stile()
    for i in range(0, 16, 2): A(V("v_max3_f32", "v30", "v30", f"v{SB+i}", f"v{SB+i+1}"))
    A(S("s_add_u32", "s62", "s62", 16384)); W("s_cmp_lt_u32 s62, 0x40000"); W("s_cbranch_scc1 K1_SL1")
    E([V("v_mov_b32", "v31", "v30"), NOP(2), V("v_permlane32_swap_b32", "v30", "v31"), V("v_max_f32", "v30", "v30", "v31")])
    A(S("s_mov_b32", "s62", 0)); A(LABEL("K1_SL2")); A(NOP(8))
    stile()
    for i in range(16):
        A(V("v_sub_f32", f"v{SB+i}", f"v{SB+i}", "v30")); A(V("v_exp_f32", f"v{SB+i}", f"v{SB+i}"))
    for i in range(16): A(V("v_add_f32", "v14", "v14", f"v{SB+i}"))
    for i in range(8): A(V("v_cvt_pk_bf16_f32", f"v{PB+i}", f"v{SB+2*i}", f"v{SB+2*i+1}"))
    for e in range(2):
        A(S("s_add_u32", "s63", "s62", 8192 * e))
        for T in range(8):
            r = VF + 4 * (T & 1)
            for i in range(8):
                A(I(f"buffer_load_ushort v{128 + i}, v{5 if i >= 4 else 4}, s[24:27], s63 offen offset:{(i & 3) * 512 + 64 * T}", "vld", regs_of("v4") + regs_of("v5") + regs_of("s63"), regs_of(f"v{128 + i}"), stage="z"))
            W("s_waitcnt vmcnt(0)")
            for i in range(4): A(V("v_lshl_or_b32", f"v{r+i}", f"v{129 + 2*i}", 16, f"v{128 + 2*i}"))
            A(MFMA(rs("a", 16 * T, 16), rs("v", r, 4), rs("v", PB + 4 * e, 4), rs("a", 16 * T, 16)))
    A(NOP(8)); A(NOP(8))
    A(S("s_add_u32", "s62", "s62", 16384)); W("s_cmp_lt_u32 s62, 0x40000"); W("s_cbranch_scc1 K1_SL2")
    E([V("v_mov_b32", "v15", "v14"), NOP(2), V("v_permlane32_swap_b32", "v14", "v15"), V("v_add_f32", "v14", "v14", "v15"), V("v_rcp_f32", "v25", "v14")])
    A(S("s_lshl_b32", "s70", "s6", 14))
    for fi in range(16):
        dq = 16 + 4 * (fi & 1)
        for j in range(4):
            r = 8 * fi + 2 * j
            E([V("v_accvgpr_read_b32", "v26", f"a{r}"), V("v_accvgpr_read_b32", "v27", f"a{r+1}"), V("v_mul_f32", "v26", "v26", "v25"), V("v_mul_f32", "v27", "v27", "v25"),
               V("v_cvt_pk_bf16_f32", f"v{dq+j}", "v26", "v27")])
        if fi and fi % 4 == 0: A(S("s_add_u32", "s70", "s70", 4096))
        A(BST(4, rs("v", dq, 4), "v24", "s[28:31]", "s70", (fi & 3) * 1024, OPT["st_mods"]))
        W("s_waitcnt vmcnt(0)")
    code, nn = fix_hazards(c)
    return code

def k1():
    c = []
    A = c.append; E = c.extend
    A(RAW("s_cmp_ge_u32 s2, 256")); A(RAW("s_cbranch_scc1 K1_END"))
    E(STAMP(0))
    A(RAW("s_load_dwordx16 s[32:47], s[0:1], 0")); A(RAW("s_load_dwordx8 s[48:55], s[0:1], 64"))
    A(V("v_lshrrev_b32", "v26", 6, "v0")); A(V("v_and_b32", "v0", 63, "v0"))
    A(V("v_readfirstlane_b32", "s56", "v26"))
    A(S("s_and_b32", "s7", "s2", 3)); A(S("s_lshr_b32", "s5", "s2", 3))
    A(S("s_and_b32", "s6", "s5", 3)); A(S("s_lshl_b32", "s3", "s7", 2)); A(S("s_add_u32", "s6", "s6", "s3"))
    A(S("s_lshr_b32", "s3", "s6", 1))
    A(S("s_and_b32", "s4", "s2", 4)); A(S("s_lshl_b32", "s4", "s4", 1)); A(S("s_lshr_b32", "s61", "s5", 2)); A(S("s_add_u32", "s4", "s4", "s61"))
    A(S("s_lshl_b32", "s57", "s56", 13)); A(S("s_lshl_b32", "s60", "s56", 12)); A(S("s_mul_i32", "s59", "s56", 7168))
    A(S("s_lshr_b32", "s58", "s56", 1)); A(S("s_lshl_b32", "s58", "s58", 7)); A(S("s_add_u32", "s58", "s58", "s57"))
    A(S("s_mov_b32", "s67", "0xffff0000"))
    A(V("v_lshrrev_b32", "v27", 3, "v0")); A(V("v_and_b32", "v28", 7, "v0"))
    A(V("v_lshrrev_b32", "v29", 4, "v0")); A(V("v_xor_b32", "v30", "v28", "v29"))
    A(V("v_lshlrev_b32", "v30", 4, "v30")); A(V("v_xor_b32", "v31", 64, "v30"))
    A(S("s_mul_i32", "s61", "s56", 32 * 896))
    A(V("v_mul_u32_u24", "v16", 896, "v27")); A(V("v_add_u32", "v16", "s61", "v16"))
    A(V("v_add_u32", "v1", "v16", "v30")); A(V("v_add_u32", "v2", "v16", "v31")); A(V("v_add_u32", "v2", 6144, "v2"))
    A(V("v_add_u32", "v3", 12288, "v1")); A(V("v_add_u32", "v4", 12288, "v2"))
    A(RAW("s_waitcnt lgkmcnt(0)"))
    A(S("s_mul_i32", "s61", "s4", 128 * 896)); E(srd_off(8, 32, "s61", 2048 * 896))
    xd = []
    for g in range(7):
        for q in range(4):
            xd.append(([S("s_add_u32", "m0", "s57", XOFF(g)), S("s_mov_b32", f"s{62 + (g & 1)}", 128 * g)] if q == 0 else []) +
                      [DMA(f"v{1+q}", "s[8:11]", f"s{62 + (g & 1)}", q * 1024, f"x{g}")])
    head = c; c = []; A = c.append; E = c.extend
    A(RAW("s_cmp_ge_u32 s56, 2")); A(S("s_cselect_b32", "s68", "s46", "s44")); A(S("s_cselect_b32", "s69", "s47", "s45"))
    A(S("s_mul_i32", "s61", "s6", 224)); E(srd_off(12, 68, "s61", 448 * 3584))
    A(S("s_lshl_b32", "s61", "s6", 9)); E(srd_off(16, 38, "s61", 448 * 8192))
    A(S("s_lshl_b32", "s61", "s3", 20)); A(S("s_add_u32", "s61", "s61", 1536 * 512))
    E(srd_off(20, 34, "s61", 8 << 20)); E(srd_off(24, 36, "s61", 8 << 20))
    A(S("s_mul_i32", "s61", "s4", 4 * NKAP * 1024)); E(srd_off(28, 54, "s61", 64 * NKAP * 1024))
    A(S("s_lshl_b32", "s70", "s6", 14))
    A(S("s_mul_i32", "s71", "s6", 7168)); A(S("s_add_u32", "s71", "s71", 256 * 1024))
    A(S("s_and_b32", "s61", "s56", 1)); A(S("s_mul_i32", "s61", "s61", 32 * 3584))
    for q in range(7):
        A(V("v_add_u32", "v16", 64 * q, "v0")); A(V("v_mul_u32_u24", "v17", 4682, "v16")); A(V("v_lshrrev_b32", "v17", 16, "v17"))
        A(V("v_mul_u32_u24", "v18", 14, "v17")); A(V("v_sub_u32", "v18", "v16", "v18"))
        A(V("v_mul_u32_u24", "v17", 3584, "v17")); A(V("v_lshl_add_u32", "v17", "v18", 4, "v17"))
        A(V("v_add_u32", "v17", "s61", "v17")); A(V("v_subrev_u32", f"v{248+q}", (q & 3) * 1024, "v17"))
    def dma_stage(n):
        slot = (n % 5) * SLOT
        out = []
        sr = [62, 63, 64, 65]
        def grp(m0s, m0i, soff, srdn, vs, gi):
            s_ = sr[(2 * n + gi) & 3]
            first = [S("s_add_u32", "m0", m0s, m0i), S("s_mov_b32", f"s{s_}", hex(soff))]
            for k, v in enumerate(vs):
                out.append((first if k == 0 else []) + [DMA(f"v{v}", f"s[{srdn}:{srdn+3}]", f"s{s_}", k * 1024, n, OPT["k1d"])])
        if n < 7:
            grp("s58", slot, n * 64 * 3584, 12, [1, 2, 3, 4], 0); grp("s58", slot + 4096, n * 64 * 3584, 12, [5, 6, 7], 1)
        elif n < 15:
            p, hs = (n - 7) >> 1, (n - 7) & 1
            so = hs * 224 * 8192 + p * 128
            grp("s59", slot, so, 16, [1, 2, 3, 4], 0); grp("s59", slot + 4096, so + 32 * 8192, 16, [1, 2, 3], 1)
        elif n < 23:
            t0 = 2 * (n - 15)
            grp("s60", slot, t0 * 16384, 20, [1, 2, 3, 4], 0); grp("s60", slot + 16384, (t0 + 1) * 16384, 20, [1, 2, 3, 4], 1)
        else:
            qd, hs = (n - 23) >> 1, (n - 23) & 1
            so = hs * 256 * 512 + qd * 128
            grp("s57", slot, so, 24, [1, 2, 3, 4], 0); grp("s57", slot + 4096, so + 32 * 512, 24, [1, 2, 3, 4], 1)
        return out
    A(S("s_lshr_b32", "s61", "s5", 2)); A(S("s_lshl_b32", "s61", "s61", 2)); A(S("s_add_u32", "s61", "s61", "s56"))
    A(V("v_mov_b32", "v21", "0x80000000"))
    A(S("s_mul_i32", "s66", "s61", 14)); A(V("v_add_u32", "v16", "s66", "v0")); A(V("v_lshlrev_b32", "v17", 13, "v16"))
    A(V("v_cmp_gt_u32", "vcc", 14, "v0")); A(V("v_cndmask_b32", "v17", "v21", "v17", "vcc")); A(V("v_accvgpr_write_b32", f"a{ST+20}", "v17"))
    A(S("s_and_b32", "s66", "s6", 1)); A(S("s_lshl_b32", "s66", "s66", 5)); A(S("s_add_u32", "s66", "s66", "s61")); A(S("s_lshl_b32", "s66", "s66", 4))
    A(V("v_add_u32", "v16", "s66", "v0")); A(V("v_cmp_gt_u32", "vcc", 16, "v0"))
    A(V("v_lshlrev_b32", "v18", 7, "v16")); A(V("v_cndmask_b32", "v18", "v21", "v18", "vcc")); A(V("v_accvgpr_write_b32", f"a{ST+21}", "v18"))
    A(V("v_lshrrev_b32", "v18", 1, "v16")); A(V("v_lshlrev_b32", "v17", 9, "v18")); A(V("v_and_b32", "v16", 1, "v16")); A(V("v_lshl_add_u32", "v18", "v16", 7, "v17"))
    A(V("v_cndmask_b32", "v18", "v21", "v18", "vcc")); A(V("v_accvgpr_write_b32", f"a{ST+22}", "v18"))
    A(S("s_lshl_b32", "s66", "s2", 2)); A(S("s_add_u32", "s66", "s66", "s56")); A(S("s_lshl_b32", "s66", "s66", 4)); A(V("v_add_u32", "v16", "s66", "v0"))
    A(V("v_lshlrev_b32", "v16", 7, "v16")); A(V("v_cndmask_b32", "v16", "v21", "v16", "vcc")); A(V("v_accvgpr_write_b32", f"a{ST+23}", "v16"))
    A(V("v_add_u32", "v16", hex(1 << 21), "v16")); A(V("v_accvgpr_write_b32", f"a{ST+24}", "v16"))
    E(srd(92, "s40", "s41", 4096 * 896) + srd(96, "s48", "s49", 1792 * 896)); A(S("s_mov_b32", "s66", 131072))
    def touch(kind, k):
        u = V("v_accvgpr_read_b32", "v31", f"a{ST + dict(q=20, k=21, v=22, o=23 + k, d=23)[kind]}")
        sr, so, im = dict(q=(16, 0, 128 * k), k=(20, "s66" if k else 0, 0), v=(24, 0, 256 * k), o=(92, 0, 0), d=(96, 0, 0))[kind]
        return [u, BLD(1, "a200", "v31", f"s[{sr}:{sr+3}]", so, im, "t")]
    def stash(i, v): A(V("v_accvgpr_write_b32", f"a{ST+i}", v))
    A(V("v_lshrrev_b32", "v19", 2, "v0")); A(V("v_and_b32", "v19", 4, "v19")); A(V("v_xor_b32", "v19", "v28", "v19")); A(V("v_lshlrev_b32", "v19", 4, "v19"))
    A(S("s_mul_i32", "s61", "s56", 56 * 8192))
    A(V("v_lshl_add_u32", "v16", "v27", 13, "v19")); A(V("v_add_u32", "v16", "s61", "v16"))
    for q in range(4):
        stash(q, "v16")
        if q < 3: A(V("v_add_u32", "v16", 65536 - 1024, "v16"))
    A(S("s_lshl_b32", "s61", "s56", 7))
    A(V("v_lshlrev_b32", "v16", 9, "v27")); A(V("v_add_u32", "v16", "s61", "v16"))
    A(V("v_add_u32", "v17", "v16", "v30")); stash(4, "v17"); A(V("v_add_u32", "v17", 6144, "v17")); stash(6, "v17")
    A(V("v_add_u32", "v17", "v16", "v31")); A(V("v_add_u32", "v17", 3072, "v17")); stash(5, "v17"); A(V("v_add_u32", "v17", 6144, "v17")); stash(7, "v17")
    A(S("s_lshl_b32", "s61", "s56", 15))
    A(V("v_lshl_add_u32", "v16", "v27", 9, "v19")); A(V("v_add_u32", "v16", "s61", "v16"))
    for q in range(4):
        stash(8 + q, "v16")
        if q < 3: A(V("v_add_u32", "v16", 3072, "v16"))
    A(V("v_lshrrev_b32", "v20", 5, "v0")); A(V("v_bfe_u32", "v21", "v0", 4, 1)); A(V("v_bfe_u32", "v22", "v0", 2, 2)); A(V("v_and_b32", "v23", 3, "v0"))
    A(V("v_lshlrev_b32", "v16", 7, "v22")); A(V("v_lshrrev_b32", "v17", 1, "v22")); A(V("v_lshl_add_u32", "v16", "v17", 6, "v16")); A(V("v_lshl_add_u32", "v16", "v21", 5, "v16"))
    A(V("v_lshl_add_u32", "v17", "v20", 9, "v16")); A(V("v_lshl_add_u32", "v17", "v23", 3, "v17")); stash(18, "v17")
    A(V("v_xor_b32", "v17", 64, "v17")); stash(19, "v17")
    A(V("v_and_b32", "v18", 1, "v23")); A(V("v_lshlrev_b32", "v18", 1, "v18")); A(V("v_lshrrev_b32", "v17", 1, "v23")); A(V("v_or_b32", "v18", "v18", "v17"))
    A(V("v_lshl_add_u32", "v17", "v20", 10, "v16")); A(V("v_lshl_add_u32", "v17", "v18", 3, "v17")); stash(12, "v17")
    A(V("v_xor_b32", "v17", 64, "v17")); stash(13, "v17")
    A(V("v_lshl_add_u32", "v17", "v20", 3, "v22")); A(V("v_mul_u32_u24", "v17", 224, "v17")); A(V("v_lshl_add_u32", "v17", "v23", 3, "v17"))
    A(V("v_mul_u32_u24", "v18", 16512, "v21")); A(V("v_add_u32", "v25", "v17", "v18"))
    A(V("v_bfe_u32", "v16", "v0", 3, 2)); A(V("v_lshlrev_b32", "v16", 10, "v16")); A(V("v_lshl_add_u32", "v16", "v28", 7, "v16"))
    A(V("v_bfe_u32", "v17", "v0", 1, 3)); A(V("v_xor_b32", "v17", "v17", "v20")); A(V("v_lshl_add_u32", "v16", "v17", 4, "v16"))
    A(S("s_add_u32", "s61", "s57", SLOT))
    for sp in range(4):
        A(V("v_xor_b32", "v17", 32 * sp, "v16")); stash(14 + sp, "v17"); A(V("v_add_u32", f"v{8+sp}", "s61", "v17"))
    A(S("s_mul_i32", "s61", "s56", NKAP * 1024)); A(V("v_lshlrev_b32", "v24", 4, "v0")); A(V("v_add_u32", "v24", "s61", "v24"))
    A(V("v_mov_b32", "v26", "0x3f803f80"))
    for r in (12, 13, 14, 15): A(V("v_mov_b32", f"v{r}", 0))
    setup = c; c = head; A = c.append; E = c.extend
    per = -(-len(setup) // (len(xd) - 4))
    sp_ = 0
    for k, x in enumerate(xd):
        E(x)
        if k >= 3:
            e_ = min(sp_ + per, len(setup))
            while e_ < len(setup) and setup[e_].t.split()[0] in ("s_addc_u32", "s_cselect_b32"): e_ += 1
            E(setup[sp_:e_]); sp_ = e_
    E(setup[sp_:])
    for q in range(7): A(V("v_mov_b32", f"v{1+q}", f"v{248+q}"))
    for x in dma_stage(0): E(x)
    E(STAMP(1))
    xa = [AReg(8 + i) for i in range(4)]
    def xread(g):
        A(WAITV([f"x{g}"]))
        for sp in range(4):
            pre, off = xa[sp].at(XOFF(g) - SLOT); E(pre)
            A(DSR("ds_read_b128", rs("v", X0 + 16 * g + 4 * sp, 4), f"v{8+sp}", off, tag=("x", g, sp)))
    def stats(g):
        A(WAITL([("x", g, 3)]))
        for i in range(16):
            r = X0 + 16 * g + i
            A(V("v_dot2_f32_bf16", f"v{12 + (i & 1)}", f"v{r}", "v26", f"v{12 + (i & 1)}"))
            A(V("v_dot2_f32_bf16", f"v{14 + (i & 1)}", f"v{r}", f"v{r}", f"v{14 + (i & 1)}"))
    xread(0); E(STAMP(2))
    for g in range(1, 7):
        xread(g); stats(g - 1)
        if g == 2:
            for x in dma_stage(1): E(x)
        if g == OPT["s2at"]:
            for x in dma_stage(2): E(x)
    E(STAMP(3))
    stats(6)
    A(V("v_mov_b32", "v8", "v25"))
    A(V("v_add_f32", "v12", "v12", "v13")); A(V("v_add_f32", "v14", "v14", "v15"))
    A(V("v_mov_b32", "v13", "v12")); A(V("v_mov_b32", "v15", "v14"))
    A(V("v_permlane32_swap_b32", "v12", "v13")); A(V("v_permlane32_swap_b32", "v14", "v15"))
    A(V("v_add_f32", "v12", "v12", "v13")); A(V("v_add_f32", "v14", "v14", "v15"))
    A(V("v_mul_f32", "v13", hex(f2u(1 / 448.)), "v12"))
    A(V("v_mul_f32", "v14", hex(f2u(1 / 448.)), "v14"))
    A(V("v_fma_f32", "v14", "-v13", "v13", "v14")); A(V("v_max_f32", "v14", 0, "v14"))
    A(V("v_add_f32", "v14", hex(f2u(1e-5)), "v14")); A(V("v_rsq_f32", "v12", "v14"))
    A(V("v_mul_f32", "v12", hex(f2u(CSC)), "v12"))
    A(V("v_mul_f32", "v13", "v13", "v12")); A(V("v_sub_f32", "v13", 0, "v13"))
    A(V("v_mov_b32", "v14", 0)); A(V("v_mov_b32", "v15", 0))
    A(WAITV([0])); A(BAR())
    pro = c

    mf = []; reads = []
    D = OPT["D"]
    rstream = []; bar = {}
    state = dict(stage=0)
    def ring(i): return RING + 4 * (i % 8)
    def add(stage, rd_fn, d, b, cc, pre=None):
        i = len(mf)
        if stage != state["stage"]:
            it = Item([WAITV([stage]), BAR()], after=i - D, before=i); rstream.append(it); bar[stage] = it; state["stage"] = stage
        if pre: rstream.append(Item(pre, after=i - D, before=i))
        ins = rd_fn(ring(i), i)
        rstream.append(Item(ins, after=i - D, before=max(i - 1, 0)))
        mf.append(MFMA(d, rs("a", ring(i), 4), b, cc, need=[x.tag for x in ins if x.k == "dsr"]))
    def tr2(ar, a0, a1):
        def f(rg, i):
            p0, o0 = ar.at(a0); p1, o1 = ar.at(a1); assert not p1
            return p0 + [DSR("ds_read_b64_tr_b16", rs("a", rg, 2), f"v{ar.v}", o0, tag=(i, 0)), DSR("ds_read_b64_tr_b16", rs("a", rg + 2, 2), f"v{ar.v}", o1, tag=(i, 1))]
        return f
    def unst(dst, i): return V("v_accvgpr_read_b32", f"v{dst}", f"a{ST+i}")
    ga = AReg(8)
    for s in range(28):
        n, ks = s >> 2, s & 3
        for tt in range(7):
            a0 = (n % 5) * SLOT + (ks >> 1) * 8192 + 16 * (ks & 1) * 224 + 32 * tt
            d = rs("a", 16 * tt, 16)
            add(n, tr2(ga, a0, a0 + 4 * 224), d, rs("v", X0 + 4 * s, 4), "0" if s == 0 else d)
    iWQ = len(mf)
    wa = [AReg(8), AReg(9)]
    for p in range(4):
        for s in range(28):
            n, ks = 7 + 2 * p + s // 14, s % 14
            for th in range(2):
                a0 = (n % 5) * SLOT + ks * 2048
                d = rs("v", (R1 if p & 1 else R0) + 16 * th, 16)
                add(n, tr2(wa[th], a0, a0 + 512), d, rs("v", X0 + 4 * s, 4), "0" if s == 0 else d,
                    pre=[unst(8, 12), unst(9, 13)] if (p, s, th) == (0, 0, 0) else None)
    iS = len(mf)
    ka = [AReg(8 + i) for i in range(4)]
    for j in range(16):
        n = 15 + (j >> 1)
        for ks in range(16):
            a0 = (n % 5) * SLOT + (j & 1) * 16384 + (ks >> 2) * 4096
            def f(rg, i, a0=a0, ks=ks):
                p0, o0 = ka[ks & 3].at(a0)
                return p0 + [DSR("ds_read_b128", rs("a", rg, 4), f"v{8 + (ks & 3)}", o0, tag=(i, 0))]
            d = rs("v", sbuf(j), 16)
            add(n, f, d, rs("v", QF(ks), 4), d if ks else ("0" if j < 2 else rs("v", CIN, 16)),
                pre=[unst(8 + i, 14 + i) for i in range(4)] if (j, ks) == (0, 0) else None)
    iPV = len(mf)
    va = [AReg(8), AReg(9)]
    def oacc(T): return (("a", 32 * ((T >> 1) & 1) + 16 * (T & 1)) if T < 6 else ("v", CIN if T == 6 else SA[1]))
    olast = {}; ofirst = {}
    for qd in range(4):
        order = [(kap, th) for kap in range(32) for th in range(2)] if qd < 3 else [(kap, th) for th in range(2) for kap in range(32)]
        for kap, th in order:
            n = 23 + 2 * qd + (kap >> 4)
            a0 = (n % 5) * SLOT + (kap & 15) * 2048
            k_, b_ = oacc(2 * qd + th); d = rs(k_, b_, 16)
            ofirst.setdefault(2 * qd + th, len(mf)); olast[2 * qd + th] = len(mf)
            add(max(n, state["stage"]), tr2(va[th], a0, a0 + 1024), d, rs("v", PF(kap), 4), d if kap else "0",
                pre=[unst(8, 18), unst(9, 19)] if (qd, kap, th) == (0, 0, 0) else None)
    dstream = []
    for n in (3, 4):
        for k, ins in enumerate(dma_stage(n)): dstream.append(Item(ins, after=(n - 3) * 14 + 2 * k - 1, before=bar[n - 1].after))
    for n in range(5, 31):
        if n in (7, 15, 23):
            base = {7: 0, 15: 4, 23: 8}[n]
            dstream.append(Item([unst(1 + q, base + q) for q in range(4)], dep=bar[n - 3]))
        for k, ins in enumerate(dma_stage(n)):
            dstream.append(Item(ins, dep=bar[n - 3], lag=k * OPT["dma_gap"] if k else 0, before=bar[n - 1].after))
    vs = []
    def P(ins, after=-1, before=10**9):
        for x in ins: vs.append(Item(x, after=after, before=before))
    for s in range(28):
        for j in range(4):
            r = X0 + 4 * s + j; t0, t1 = (16, 17) if j & 1 else (18, 19)
            P([V("v_lshlrev_b32", f"v{t0}", 16, f"v{r}"), V("v_and_b32", f"v{t1}", "s67", f"v{r}"),
               V("v_fma_f32", f"v{t0}", f"v{t0}", "v12", "v13"), V("v_fma_f32", f"v{t1}", f"v{t1}", "v12", "v13"),
               V("v_cvt_pk_bf16_f32", f"v{r}", f"v{t0}", f"v{t1}")], before=7 * s)
    def qconv(p):
        rb = R1 if p & 1 else R0
        aft = iWQ + 56 * (p + 1) + 1
        for f in range(4):
            ks = 4 * p + f
            bef = (iWQ + 56 * (p + 2)) if p < 2 else (iS if p == 2 else iS + ks)
            P([V("v_cvt_pk_bf16_f32", f"v{QF(ks)+j}", f"v{rb + 8*f + 2*j}", f"v{rb + 8*f + 2*j + 1}") for j in range(4)], after=aft, before=min(bef, iS + ks))
    def guepi(tt):
        dq = 16 + 4 * (tt & 1)
        for j in range(4):
            P([V("v_accvgpr_read_b32", "v26", f"a{16*tt + 2*j}"), V("v_accvgpr_read_b32", "v27", f"a{16*tt + 8 + 2*j}"),
               V("v_accvgpr_read_b32", "v28", f"a{16*tt + 2*j + 1}"), V("v_accvgpr_read_b32", "v29", f"a{16*tt + 8 + 2*j + 1}"),
               V("v_mul_f32", "v26", "v26", "v27"), V("v_mul_f32", "v28", "v28", "v29"),
               V("v_cvt_pk_bf16_f32", f"v{dq+j}", "v26", "v28")], after=iWQ + 1, before=iPV)
        if tt == 4: P([S("s_add_u32", "s71", "s71", 4096)])
        P([BST(4, rs("v", dq, 4), "v24", "s[28:31]", "s71", (tt & 3) * 1024, OPT["st_mods"])])
    ts = []
    for spec in OPT["tp"].split(","):
        if spec:
            for x in touch(spec[0], int(spec[1])): ts.append(Item(x, after=int(spec[3:]), before=int(spec[3:]) + 8))
    for tt in range(3): guepi(tt)
    qconv(0)
    for tt in range(3, 7): guepi(tt)
    qconv(1); qconv(2); qconv(3)
    for j in range(16):
        b = sbuf(j); aft = iS + 16 * j + 15 + 2
        nxt = [k for k in range(j + 1, 16) if sbuf(k) == b]
        bef = iS + 16 * nxt[0] if nxt else iPV + 4 * j
        if j == 15: bef = iPV + 4 * j
        if j == 0:
            ins = [V("v_max3_f32", "v30", f"v{b}", f"v{b+1}", f"v{b+2}")]
            for i in range(3, 15, 2): ins.append(V("v_max3_f32", "v30", "v30", f"v{b+i}", f"v{b+i+1}"))
            ins += [V("v_max_f32", "v30", "v30", f"v{b+15}"), V("v_mov_b32", "v31", "v30"), NOP(2), V("v_permlane32_swap_b32", "v30", "v31"), V("v_max_f32", "v30", "v30", "v31")]
            ins += [V("v_sub_f32", f"v{CIN+i}", 0, "v30") for i in range(16)]
            P(ins, after=aft, before=iS + 32)
        for i in range(0, 16, 2):
            ins = []
            if j < 2: ins += [V("v_sub_f32", f"v{b+i}", f"v{b+i}", "v30"), V("v_sub_f32", f"v{b+i+1}", f"v{b+i+1}", "v30")]
            ins += [V("v_exp_f32", f"v{b+i}", f"v{b+i}"), V("v_exp_f32", f"v{b+i+1}", f"v{b+i+1}"),
                    V("v_add_f32", "v14", "v14", f"v{b+i}"), V("v_add_f32", "v15", "v15", f"v{b+i+1}"),
                    V("v_cvt_pk_bf16_f32", f"v{PF(2*j) + (i >> 1)}", f"v{b+i}", f"v{b+i+1}")]
            P(ins, after=aft, before=bef)
    P([V("v_add_f32", "v14", "v14", "v15"), V("v_mov_b32", "v15", "v14"), NOP(2), V("v_permlane32_swap_b32", "v14", "v15"),
       V("v_add_f32", "v14", "v14", "v15"), V("v_rcp_f32", "v25", "v14"), V("v_cmp_ngt_f32", "vcc", hex(f2u(2.0 ** OPT["thr"])), "v14")])
    for T in range(8):
        k_, b_ = oacc(T); aft = min(olast[T] + 2, len(mf) - 1)
        bef = ofirst[T + 4] if T + 4 < 6 else 10**9
        for e in range(2):
            dq = 16 + 4 * e
            for j in range(4):
                r = b_ + 8 * e + 2 * j; t0, t1 = (26, 27) if j & 1 else (28, 29)
                if k_ == "a":
                    ins = [V("v_accvgpr_read_b32", f"v{t0}", f"a{r}"), V("v_accvgpr_read_b32", f"v{t1}", f"a{r+1}"),
                           V("v_mul_f32", f"v{t0}", f"v{t0}", "v25"), V("v_mul_f32", f"v{t1}", f"v{t1}", "v25")]
                else:
                    ins = [V("v_mul_f32", f"v{t0}", f"v{r}", "v25"), V("v_mul_f32", f"v{t1}", f"v{r+1}", "v25")]
                P(ins + [V("v_cvt_pk_bf16_f32", f"v{dq+j}", f"v{t0}", f"v{t1}")], after=aft, before=bef)
            fi = 2 * T + e
            if fi and fi % 4 == 0: P([S("s_add_u32", "s70", "s70", 4096)])
            P([BST(4, rs("v", dq, 4), "v24", "s[28:31]", "s70", (fi & 3) * 1024, OPT["st_mods"])])
    ss = [Item(STAMP(4 + k), after=ix, before=ix + 1) for k, ix in enumerate([0, iWQ, iS, iPV, len(mf) - 2])] if OPT["stamp"] else []
    main = schedule(mf, [rstream, dstream, vs, ts, ss], budget=OPT["budget"])
    code = resolve_waits(pro + main)
    code, nn = fix_hazards(code)
    code += [RAW("s_cbranch_vccz K1_FIN")] + k1_slow() + [LABEL("K1_FIN")] + fix_hazards(STAMP_OUT(9, 0))[0]
    check_scc(code)
    code.append(LABEL("K1_END"))
    print(f"K1: {len(code)} instrs, {len(mf)} mfma, {nn} nops inserted", file=sys.stderr)
    return code

def k2():
    c = []; A = c.append; E = c.extend
    PD = 12
    A(RAW("s_cmp_ge_u32 s2, 224")); A(RAW("s_cbranch_scc1 K2_END"))
    E(STAMP(0))
    A(RAW("s_load_dwordx16 s[32:47], s[0:1], 0")); A(RAW("s_load_dwordx8 s[48:55], s[0:1], 64"))
    A(V("v_lshrrev_b32", "v26", 6, "v0")); A(V("v_and_b32", "v0", 63, "v0"))
    A(V("v_readfirstlane_b32", "s56", "v26"))
    A(S("s_and_b32", "s3", "s2", 7)); A(S("s_lshr_b32", "s4", "s2", 3))
    A(S("s_mul_i32", "s5", "s4", 9363)); A(S("s_lshr_b32", "s5", "s5", 16))
    A(S("s_mul_i32", "s6", "s5", 7)); A(S("s_sub_u32", "s6", "s4", "s6"))
    A(S("s_lshl_b32", "s3", "s3", 2)); A(S("s_add_u32", "s5", "s5", "s3"))
    A(S("s_mul_i32", "s57", "s56", PD * 2048))
    A(V("v_lshrrev_b32", "v27", 3, "v0")); A(V("v_and_b32", "v28", 7, "v0"))
    A(V("v_lshrrev_b32", "v19", 2, "v0")); A(V("v_and_b32", "v19", 4, "v19")); A(V("v_xor_b32", "v19", "v28", "v19")); A(V("v_lshlrev_b32", "v19", 4, "v19"))
    A(V("v_mul_u32_u24", "v1", 896, "v27")); A(V("v_add_u32", "v1", "v1", "v19"))
    for q in range(1, 4): A(V("v_add_u32", f"v{1+q}", 6144, f"v{q}"))
    A(V("v_lshlrev_b32", "v5", 4, "v0")); A(V("v_add_u32", "v6", NKAP * 1024, "v5"))
    A(S("s_mul_i32", "s62", "s56", 28 * 16 * 896))
    A(S("s_mul_i32", "s63", "s56", 28 * 1024)); A(S("s_add_u32", "s63", "s63", 256 * 1024))
    A(RAW("s_waitcnt lgkmcnt(0)"))
    A(S("s_lshl_b32", "s61", "s6", 7)); E(srd_off(8, 48, "s61", 1792 * 896)); E(srd_off(12, 40, "s61", 4096 * 896))
    A(S("s_mul_i32", "s61", "s5", 2 * NKAP * 1024)); E(srd_off(16, 54, "s61", 64 * NKAP * 1024))
    BR = 64
    def issue(j):
        if j >= 46: return
        if j == 14:
            A(S("s_mul_i32", "s62", "s56", 64 * 16 * 896)); A(S("s_lshl_b32", "s63", "s56", 16))
        A(S("s_add_u32", "m0", "s57", (j % (PD // 2)) * 4096))
        sr = "s[8:11]" if j < 14 else "s[12:15]"
        for q in range(4): A(DMA(f"v{1+q}", sr, "s62", q * 1024, ("a", j), OPT["k2a"]))
        for u in range(2):
            st = 2 * j + u
            for rb in range(2):
                A(BLD(4, rs("v", BR + (st % PD) * 8 + 4 * rb, 4), f"v{5+rb}", "s[16:19]", "s63", u * 1024, ("b", j), OPT["k2b"]))
        A(S("s_add_u32", "s62", "s62", 32 * 896)); A(S("s_add_u32", "s63", "s63", 2048))
    for j in range(PD // 2): issue(j)
    E(srd(20, "s32", "s33", hex(2048 * 896))); E(srd(24, "s50", "s51", hex(2048 * 896)))
    A(V("v_lshrrev_b32", "v20", 5, "v0")); A(V("v_bfe_u32", "v21", "v0", 4, 1)); A(V("v_bfe_u32", "v22", "v0", 2, 2)); A(V("v_and_b32", "v23", 3, "v0"))
    A(V("v_lshlrev_b32", "v16", 7, "v22")); A(V("v_lshrrev_b32", "v17", 1, "v22")); A(V("v_lshl_add_u32", "v16", "v17", 6, "v16"))
    A(V("v_lshl_add_u32", "v16", "v20", 9, "v16")); A(V("v_and_b32", "v17", 1, "v23")); A(V("v_lshl_add_u32", "v16", "v17", 5, "v16"))
    A(V("v_lshl_add_u32", "v16", "v21", 4, "v16")); A(V("v_lshrrev_b32", "v17", 1, "v23")); A(V("v_lshl_add_u32", "v16", "v17", 3, "v16"))
    A(V("v_xor_b32", "v17", 64, "v16")); A(V("v_add_u32", "v8", "s57", "v16")); A(V("v_add_u32", "v9", "s57", "v17"))
    RB = 4 * PD * 2048
    A(S("s_lshl_b32", "s61", "s56", 14)); A(S("s_add_u32", "s61", "s61", RB)); A(V("v_add_u32", "v10", "s61", "v5"))
    A(S("s_lshl_b32", "s61", "s56", 12)); A(S("s_add_u32", "s61", "s61", RB)); A(V("v_add_u32", "v11", "s61", "v5"))
    A(S("s_lshr_b32", "s61", "s56", 1)); A(S("s_lshl_b32", "s61", "s61", 5)); A(S("s_lshl_b32", "s64", "s5", 6)); A(S("s_add_u32", "s61", "s61", "s64"))
    A(S("s_mul_i32", "s61", "s61", 896)); A(S("s_lshl_b32", "s64", "s6", 7)); A(S("s_add_u32", "s61", "s61", "s64"))
    A(S("s_and_b32", "s64", "s56", 1)); A(S("s_lshl_b32", "s64", "s64", 6)); A(S("s_add_u32", "s61", "s61", "s64"))
    A(V("v_and_b32", "v16", 31, "v0")); A(V("v_mul_u32_u24", "v16", 896, "v16")); A(V("v_lshl_add_u32", "v16", "v20", 5, "v16")); A(V("v_add_u32", "v7", "s61", "v16"))
    AF = 32
    XR = 48; G = 160; PR = 176
    A(BLD(4, rs("v", XR, 4), "v7", "s[20:23]", 0, 0, "x")); A(BLD(4, rs("v", XR + 4, 4), "v7", "s[20:23]", 0, 16, "x"))
    def rd(st):
        A(WAITV([("a", st >> 1)]))
        for cb in range(2):
            r = AF + (st & 1) * 8 + 4 * cb; o = (st % PD) * 2048
            A(DSR("ds_read_b64_tr_b16", rs("v", r, 2), f"v{8+cb}", o, tag=(st, cb, 0))); A(DSR("ds_read_b64_tr_b16", rs("v", r + 2, 2), f"v{8+cb}", o + 1024, tag=(st, cb, 1)))
    def dump(base, tg):
        for t in range(4):
            for q in range(4): A(DSW("ds_write_b128", "v10", rs("a", base + 16 * t + 4 * q, 4), t * 4096 + q * 1024, tag=(tg, t, q)))
        A(WAITL()); A(BAR())
    def gather(tg, dst):
        for sw in range(4):
            for q in range(4): A(DSR("ds_read_b128", rs("v", PR + 16 * sw + 4 * q, 4), "v11", sw * 16384 + q * 1024, tag=(tg, "r", sw, q)))
        A(WAITL())
        for i in range(16):
            A(V("v_add_f32", f"v{PR+i}", f"v{PR+i}", f"v{PR+16+i}")); A(V("v_add_f32", f"v{PR+32+i}", f"v{PR+32+i}", f"v{PR+48+i}"))
        for i in range(16): A(V("v_add_f32", f"v{dst+i}", f"v{PR+i}", f"v{PR+32+i}"))
    E(STAMP(1))
    rd(0)
    for st in range(92):
        if st in (1, 28, 60): E(STAMP({1: 2, 28: 3, 60: 4}[st]))
        if st + 1 < 92: rd(st + 1)
        A(WAITV([("b", st >> 1)]))
        ab = 0 if st < 28 else 64
        for rb in range(2):
            for cb in range(2):
                d = rs("a", ab + 16 * (2 * rb + cb), 16)
                A(MFMA(d, rs("v", AF + (st & 1) * 8 + 4 * cb, 4), rs("v", BR + (st % PD) * 8 + 4 * rb, 4), "0" if st in (0, 28) else d, need=[(st, cb, 0), (st, cb, 1)]))
        if st & 1: issue((st >> 1) + PD // 2)
        if st == 29: dump(0, "f")
        if st == 31:
            gather("f", G)
            for i in range(16):
                r = f"v{G+i}"; t = f"v{PR+i}"
                A(V("v_mul_f32", r, hex(f2u(1.0 / (CSC * CSC))), r)); A(V("v_mul_f32", t, hex(f2u(-LOG2E)), r)); A(V("v_exp_f32", t, t))
            for i in range(16):
                t = f"v{PR+i}"; A(V("v_add_f32", t, 1.0, t)); A(V("v_rcp_f32", t, t))
            for i in range(16): A(V("v_mul_f32", f"v{G+i}", f"v{G+i}", f"v{PR+i}"))
            A(BAR())
    E(STAMP(5))
    dump(64, "s")
    E(STAMP(6))
    gather("s", PR)
    A(WAITV(["x"]))
    for j in range(8):
        A(V("v_lshlrev_b32", "v16", 16, f"v{XR+j}")); A(V("v_and_b32", "v17", "0xffff0000", f"v{XR+j}"))
        A(V("v_fma_f32", "v16", f"v{PR+2*j}", f"v{G+2*j}", "v16")); A(V("v_fma_f32", "v17", f"v{PR+2*j+1}", f"v{G+2*j+1}", "v17"))
        A(V("v_cvt_pk_bf16_f32", f"v{XR+j}", "v16", "v17"))
    A(BST(4, rs("v", XR, 4), "v7", "s[24:27]", 0, 0)); A(BST(4, rs("v", XR + 4, 4), "v7", "s[24:27]", 0, 16))
    E(STAMP_OUT(7, 65536 * 4))
    code = resolve_waits(c, look=3)
    code, nn = fix_hazards(code)
    check_scc(code)
    code.append(LABEL("K2_END"))
    print(f"K2: {len(code)} instrs, {nn} nops", file=sys.stderr)
    return code

def kd(name, vg, acc):
    return f""".p2align 6
.amdhsa_kernel {name}
  .amdhsa_next_free_vgpr {vg}
  .amdhsa_next_free_sgpr 102
  .amdhsa_accum_offset {acc}
  .amdhsa_group_segment_fixed_size 0
  .amdhsa_kernarg_size 96
  .amdhsa_user_sgpr_count 2
  .amdhsa_user_sgpr_kernarg_segment_ptr 1
  .amdhsa_system_sgpr_workgroup_id_x 1
.end_amdhsa_kernel
"""
def build():
    ref = open(f"cdna_kernels/{NAME}.s.ref").read().split("\n")
    head = [l for l in ref if l.startswith(";") and "@launch" not in l and "Override" not in l and "grid=ceil" not in l]
    s = "\n".join(head) + "\n"
    s += "; @launch kernel=attn_kernel grid=(256,1,1) block=(256,1,1) lds=163840\n"
    s += "; @launch kernel=proj_kernel grid=(224,1,1) block=(256,1,1) lds=163840\n"
    s += '.amdgcn_target "amdgcn-amd-amdhsa--gfx950"\n.text\n'
    for nm, fn in (("attn_kernel", k1), ("proj_kernel", k2)):
        s += f".globl {nm}\n.p2align 8\n.type {nm},@function\n{nm}:\n" + text(fn()) + "  s_endpgm\n"
    s += '.section .rodata,"a"\n' + kd("attn_kernel", 512, 256) + kd("proj_kernel", 384, 256)
    return s
if __name__ == "__main__":
    for a in sys.argv[2:]:
        k, v = a.split("="); OPT[k] = type(OPT[k])(v)
    open(sys.argv[1], "w").write(build())
```

```python
import sys, struct
from asmlib import *
NAME = "recurrent_scan__sliding_block_cached__glu_gated_bilinear__prompt"
def f2u(x): return struct.unpack("<I", struct.pack("<f", x))[0]
LOG2E = 1.4426950408889634
CSC = LOG2E / 16.0
NKAP = 368
OPT = dict(D=6, budget=6, st_mods=" sc1", dma_gap=4, stamp=0, touch=1, touch2=1, thr=30, tat=0, s2at=5, k2a="", k2b="", k1d="", scr=0, tp="q0:30,q1:80,q2:130,q3:180,k0:234,k1:310,v0:390,v1:560,d0:600,o0:690,o1:740")
def STAMP(i):
    return ([I(f"s_memtime s[{72+2*i}:{73+2*i}]", "other", cost=1)] + ([I("s_memrealtime s[100:101]", "other")] if i == 0 else [])) if OPT["stamp"] else []
def STAMP_OUT(n, base):
    if not OPT["stamp"]: return []
    o = [RAW("s_waitcnt lgkmcnt(0) vmcnt(0)"), I(f"s_memtime s[{72+2*n}:{73+2*n}]", "other"), I("s_memrealtime s[62:63]", "other"), RAW("s_waitcnt lgkmcnt(0)")]
    o += [S("s_add_u32", "s4", "s54", hex((32 << 20) + base)), S("s_addc_u32", "s5", "s55", 0), S("s_mov_b32", "s6", 1 << 20), S("s_mov_b32", "s7", "0x20000")]
    o += [S("s_lshl_b32", "s3", "s2", 8), S("s_lshl_b32", "s61", "s56", 6), S("s_add_u32", "s3", "s3", "s61"), V("v_mov_b32", "v1", "s3")]
    for i in range(n + 1):
        o += [V("v_mov_b32", "v2", f"s{72+2*i}"), BST(1, "v2", "v1", "s[4:7]", 0, 4 * i)]
    o += [V("v_mov_b32", "v2", "s100"), BST(1, "v2", "v1", "s[4:7]", 0, 56), V("v_mov_b32", "v2", "s62"), BST(1, "v2", "v1", "s[4:7]", 0, 60)]
    return o


def srd(n, lo, hi, size):
    return [S("s_mov_b32", f"s{n}", lo), S("s_mov_b32", f"s{n+1}", hi), S("s_mov_b32", f"s{n+2}", size), S("s_mov_b32", f"s{n+3}", "0x20000")]
def srd_off(n, p, soff, total):
    return [S("s_add_u32", f"s{n}", f"s{p}", soff), S("s_addc_u32", f"s{n+1}", f"s{p+1}", 0),
            S("s_sub_u32", f"s{n+2}", hex(total), soff), S("s_mov_b32", f"s{n+3}", "0x20000")]

class AReg:
    def __init__(s, v): s.v, s.base = v, 0
    def at(s, a):
        pre = []
        if not (0 <= a - s.base <= 65535):
            nb = (a // 65536) * 65536
            pre.append(V("v_add_u32", f"v{s.v}", hex((nb - s.base) & 0xffffffff), f"v{s.v}"))
            s.base = nb
        return pre, a - s.base

X0 = 32; R0 = 144; R1 = 176; QF01 = 208; CIN = 240
SA = [160, 192, 128]
RING = 224
ST = 112
SLOT = 32768
def XOFF(g): return (1 + (g >> 1)) * SLOT + (g & 1) * 4096
def QF(ks):
    p = ks >> 2
    return (QF01 + 4 * ks) if p < 2 else ((R0 if p == 2 else R1) + 4 * (ks & 3))
def PF(kap):
    j = kap >> 1
    b = (X0 + 8 * j) if j < 14 else (SA[0] + 8 * (j - 14))
    return b + 4 * (kap & 1)
def sbuf(j): return SA[j % 3] if j < 12 else SA[j & 1]

def k1_slow():
    c = []; A = c.append; E = c.extend
    W = lambda t: A(RAW(t))
    KF = 32; SB = 96; PB = 112; VF = 120
    W("s_waitcnt vmcnt(0) lgkmcnt(0)"); A(NOP(8)); A(NOP(8))
    A(V("v_and_b32", "v1", 31, "v0")); A(V("v_lshrrev_b32", "v2", 5, "v0"))
    A(V("v_lshlrev_b32", "v3", 9, "v1")); A(V("v_lshl_add_u32", "v3", "v2", 4, "v3"))
    A(V("v_lshlrev_b32", "v4", 11, "v2")); A(V("v_lshl_add_u32", "v4", "v1", 1, "v4"))
    A(V("v_add_u32", "v5", 4096, "v4"))
    A(V("v_mov_b32", "v30", "0xff800000")); A(V("v_mov_b32", "v14", 0))
    for i in range(128): A(V("v_accvgpr_write_b32", f"a{i}", 0))
    def stile():
        for ks in range(16): A(BLD(4, rs("v", KF + 4 * ks, 4), "v3", "s[20:23]", "s62", 32 * ks, "z"))
        W("s_waitcnt vmcnt(0)")
        for ks in range(16): A(MFMA(rs("v", SB, 16), rs("v", KF + 4 * ks, 4), rs("v", QF(ks), 4), rs("v", SB, 16) if ks else "0"))
        A(NOP(8)); A(NOP(8))
    A(S("s_mov_b32", "s62", 0)); A(LABEL("K1_SL1")); A(NOP(8))
    stile()
    for i in range(0, 16, 2): A(V("v_max3_f32", "v30", "v30", f"v{SB+i}", f"v{SB+i+1}"))
    A(S("s_add_u32", "s62", "s62", 16384)); W("s_cmp_lt_u32 s62, 0x40000"); W("s_cbranch_scc1 K1_SL1")
    E([V("v_mov_b32", "v31", "v30"), NOP(2), V("v_permlane32_swap_b32", "v30", "v31"), V("v_max_f32", "v30", "v30", "v31")])
    A(S("s_mov_b32", "s62", 0)); A(LABEL("K1_SL2")); A(NOP(8))
    stile()
    for i in range(16):
        A(V("v_sub_f32", f"v{SB+i}", f"v{SB+i}", "v30")); A(V("v_exp_f32", f"v{SB+i}", f"v{SB+i}"))
    for i in range(16): A(V("v_add_f32", "v14", "v14", f"v{SB+i}"))
    for i in range(8): A(V("v_cvt_pk_bf16_f32", f"v{PB+i}", f"v{SB+2*i}", f"v{SB+2*i+1}"))
    for e in range(2):
        A(S("s_add_u32", "s63", "s62", 8192 * e))
        for T in range(8):
            r = VF + 4 * (T & 1)
            for i in range(8):
                A(I(f"buffer_load_ushort v{128 + i}, v{5 if i >= 4 else 4}, s[24:27], s63 offen offset:{(i & 3) * 512 + 64 * T}", "vld", regs_of("v4") + regs_of("v5") + regs_of("s63"), regs_of(f"v{128 + i}"), stage="z"))
            W("s_waitcnt vmcnt(0)")
            for i in range(4): A(V("v_lshl_or_b32", f"v{r+i}", f"v{129 + 2*i}", 16, f"v{128 + 2*i}"))
            A(MFMA(rs("a", 16 * T, 16), rs("v", r, 4), rs("v", PB + 4 * e, 4), rs("a", 16 * T, 16)))
    A(NOP(8)); A(NOP(8))
    A(S("s_add_u32", "s62", "s62", 16384)); W("s_cmp_lt_u32 s62, 0x40000"); W("s_cbranch_scc1 K1_SL2")
    E([V("v_mov_b32", "v15", "v14"), NOP(2), V("v_permlane32_swap_b32", "v14", "v15"), V("v_add_f32", "v14", "v14", "v15"), V("v_rcp_f32", "v25", "v14")])
    A(S("s_lshl_b32", "s70", "s6", 14))
    for fi in range(16):
        dq = 16 + 4 * (fi & 1)
        for j in range(4):
            r = 8 * fi + 2 * j
            E([V("v_accvgpr_read_b32", "v26", f"a{r}"), V("v_accvgpr_read_b32", "v27", f"a{r+1}"), V("v_mul_f32", "v26", "v26", "v25"), V("v_mul_f32", "v27", "v27", "v25"),
               V("v_cvt_pk_bf16_f32", f"v{dq+j}", "v26", "v27")])
        if fi and fi % 4 == 0: A(S("s_add_u32", "s70", "s70", 4096))
        A(BST(4, rs("v", dq, 4), "v24", "s[28:31]", "s70", (fi & 3) * 1024, OPT["st_mods"]))
        W("s_waitcnt vmcnt(0)")
    code, nn = fix_hazards(c)
    return code

def k1():
    c = []
    A = c.append; E = c.extend
    A(RAW("s_cmp_ge_u32 s2, 256")); A(RAW("s_cbranch_scc1 K1_END"))
    if OPT["scr"]:
        E([S("s_and_b32", "s3", "s2", 7), S("s_lshl_b32", "s3", "s3", 3), S("s_bfe_u32", "s4", "s2", hex((3 << 16) | 3)), S("s_or_b32", "s3", "s3", "s4"),
           S("s_andn2_b32", "s4", "s2", 63), S("s_or_b32", "s3", "s3", "s4"), RAW("s_cmp_lt_u32 s2, 256"), S("s_cselect_b32", "s2", "s3", "s2")])
    E(STAMP(0))
    A(RAW("s_load_dwordx16 s[32:47], s[0:1], 0")); A(RAW("s_load_dwordx8 s[48:55], s[0:1], 64"))
    A(V("v_lshrrev_b32", "v26", 6, "v0")); A(V("v_and_b32", "v0", 63, "v0"))
    A(V("v_readfirstlane_b32", "s56", "v26"))
    A(S("s_and_b32", "s7", "s2", 3)); A(S("s_lshr_b32", "s5", "s2", 3))
    A(S("s_and_b32", "s6", "s5", 3)); A(S("s_lshl_b32", "s3", "s7", 2)); A(S("s_add_u32", "s6", "s6", "s3"))
    A(S("s_lshr_b32", "s3", "s6", 1))
    A(S("s_and_b32", "s4", "s2", 4)); A(S("s_lshl_b32", "s4", "s4", 1)); A(S("s_lshr_b32", "s61", "s5", 2)); A(S("s_add_u32", "s4", "s4", "s61"))
    A(S("s_lshl_b32", "s57", "s56", 13)); A(S("s_lshl_b32", "s60", "s56", 12)); A(S("s_mul_i32", "s59", "s56", 7168))
    A(S("s_lshr_b32", "s58", "s56", 1)); A(S("s_lshl_b32", "s58", "s58", 7)); A(S("s_add_u32", "s58", "s58", "s57"))
    A(S("s_mov_b32", "s67", "0xffff0000"))
    A(V("v_lshrrev_b32", "v27", 3, "v0")); A(V("v_and_b32", "v28", 7, "v0"))
    A(V("v_lshrrev_b32", "v29", 4, "v0")); A(V("v_xor_b32", "v30", "v28", "v29"))
    A(V("v_lshlrev_b32", "v30", 4, "v30")); A(V("v_xor_b32", "v31", 64, "v30"))
    A(S("s_mul_i32", "s61", "s56", 32 * 896))
    A(V("v_mul_u32_u24", "v16", 896, "v27")); A(V("v_add_u32", "v16", "s61", "v16"))
    A(V("v_add_u32", "v1", "v16", "v30")); A(V("v_add_u32", "v2", "v16", "v31")); A(V("v_add_u32", "v2", 6144, "v2"))
    A(V("v_add_u32", "v3", 12288, "v1")); A(V("v_add_u32", "v4", 12288, "v2"))
    A(RAW("s_waitcnt lgkmcnt(0)"))
    A(S("s_mul_i32", "s61", "s4", 128 * 896)); E(srd_off(8, 32, "s61", 2048 * 896))
    xd = []
    for g in range(7):
        for q in range(4):
            xd.append(([S("s_add_u32", "m0", "s57", XOFF(g)), S("s_mov_b32", f"s{62 + (g & 1)}", 128 * g)] if q == 0 else []) +
                      [DMA(f"v{1+q}", "s[8:11]", f"s{62 + (g & 1)}", q * 1024, f"x{g}")])
    head = c; c = []; A = c.append; E = c.extend
    A(RAW("s_cmp_ge_u32 s56, 2")); A(S("s_cselect_b32", "s68", "s46", "s44")); A(S("s_cselect_b32", "s69", "s47", "s45"))
    A(S("s_mul_i32", "s61", "s6", 224)); E(srd_off(12, 68, "s61", 448 * 3584))
    A(S("s_lshl_b32", "s61", "s6", 9)); E(srd_off(16, 38, "s61", 448 * 8192))
    A(S("s_lshl_b32", "s61", "s3", 20)); A(S("s_add_u32", "s61", "s61", 1536 * 512))
    E(srd_off(20, 34, "s61", 8 << 20)); E(srd_off(24, 36, "s61", 8 << 20))
    A(S("s_mul_i32", "s61", "s4", 4 * NKAP * 1024)); E(srd_off(28, 54, "s61", 64 * NKAP * 1024))
    A(S("s_lshl_b32", "s70", "s6", 14))
    A(S("s_mul_i32", "s71", "s6", 7168)); A(S("s_add_u32", "s71", "s71", 256 * 1024))
    A(S("s_and_b32", "s61", "s56", 1)); A(S("s_mul_i32", "s61", "s61", 32 * 3584))
    for q in range(7):
        A(V("v_add_u32", "v16", 64 * q, "v0")); A(V("v_mul_u32_u24", "v17", 4682, "v16")); A(V("v_lshrrev_b32", "v17", 16, "v17"))
        A(V("v_mul_u32_u24", "v18", 14, "v17")); A(V("v_sub_u32", "v18", "v16", "v18"))
        A(V("v_mul_u32_u24", "v17", 3584, "v17")); A(V("v_lshl_add_u32", "v17", "v18", 4, "v17"))
        A(V("v_add_u32", "v17", "s61", "v17")); A(V("v_subrev_u32", f"v{248+q}", (q & 3) * 1024, "v17"))
    def dma_stage(n):
        slot = (n % 5) * SLOT
        out = []
        sr = [62, 63, 64, 65]
        def grp(m0s, m0i, soff, srdn, vs, gi):
            s_ = sr[(2 * n + gi) & 3]
            first = [S("s_add_u32", "m0", m0s, m0i), S("s_mov_b32", f"s{s_}", hex(soff))]
            for k, v in enumerate(vs):
                out.append((first if k == 0 else []) + [DMA(f"v{v}", f"s[{srdn}:{srdn+3}]", f"s{s_}", k * 1024, n, OPT["k1d"])])
        if n < 7:
            grp("s58", slot, n * 64 * 3584, 12, [1, 2, 3, 4], 0); grp("s58", slot + 4096, n * 64 * 3584, 12, [5, 6, 7], 1)
        elif n < 15:
            p, hs = (n - 7) >> 1, (n - 7) & 1
            so = hs * 224 * 8192 + p * 128
            grp("s59", slot, so, 16, [1, 2, 3, 4], 0); grp("s59", slot + 4096, so + 32 * 8192, 16, [1, 2, 3], 1)
        elif n < 23:
            t0 = 2 * (n - 15)
            grp("s60", slot, t0 * 16384, 20, [1, 2, 3, 4], 0); grp("s60", slot + 16384, (t0 + 1) * 16384, 20, [1, 2, 3, 4], 1)
        else:
            qd, hs = (n - 23) >> 1, (n - 23) & 1
            so = hs * 256 * 512 + qd * 128
            grp("s57", slot, so, 24, [1, 2, 3, 4], 0); grp("s57", slot + 4096, so + 32 * 512, 24, [1, 2, 3, 4], 1)
        return out
    A(S("s_lshr_b32", "s61", "s5", 2)); A(S("s_lshl_b32", "s61", "s61", 2)); A(S("s_add_u32", "s61", "s61", "s56"))
    A(V("v_mov_b32", "v21", "0x80000000"))
    A(S("s_mul_i32", "s66", "s61", 14)); A(V("v_add_u32", "v16", "s66", "v0")); A(V("v_lshlrev_b32", "v17", 13, "v16"))
    A(V("v_cmp_gt_u32", "vcc", 14, "v0")); A(V("v_cndmask_b32", "v17", "v21", "v17", "vcc")); A(V("v_accvgpr_write_b32", f"a{ST+20}", "v17"))
    A(S("s_and_b32", "s66", "s6", 1)); A(S("s_lshl_b32", "s66", "s66", 5)); A(S("s_add_u32", "s66", "s66", "s61")); A(S("s_lshl_b32", "s66", "s66", 4))
    A(V("v_add_u32", "v16", "s66", "v0")); A(V("v_cmp_gt_u32", "vcc", 16, "v0"))
    A(V("v_lshlrev_b32", "v18", 7, "v16")); A(V("v_cndmask_b32", "v18", "v21", "v18", "vcc")); A(V("v_accvgpr_write_b32", f"a{ST+21}", "v18"))
    A(V("v_lshrrev_b32", "v18", 1, "v16")); A(V("v_lshlrev_b32", "v17", 9, "v18")); A(V("v_and_b32", "v16", 1, "v16")); A(V("v_lshl_add_u32", "v18", "v16", 7, "v17"))
    A(V("v_cndmask_b32", "v18", "v21", "v18", "vcc")); A(V("v_accvgpr_write_b32", f"a{ST+22}", "v18"))
    A(S("s_lshl_b32", "s66", "s2", 2)); A(S("s_add_u32", "s66", "s66", "s56")); A(S("s_lshl_b32", "s66", "s66", 4)); A(V("v_add_u32", "v16", "s66", "v0"))
    A(V("v_lshlrev_b32", "v16", 7, "v16")); A(V("v_cndmask_b32", "v16", "v21", "v16", "vcc")); A(V("v_accvgpr_write_b32", f"a{ST+23}", "v16"))
    A(V("v_add_u32", "v16", hex(1 << 21), "v16")); A(V("v_accvgpr_write_b32", f"a{ST+24}", "v16"))
    E(srd(92, "s40", "s41", 4096 * 896) + srd(96, "s48", "s49", 1792 * 896)); A(S("s_mov_b32", "s66", 131072))
    def touch(kind, k):
        u = V("v_accvgpr_read_b32", "v31", f"a{ST + dict(q=20, k=21, v=22, o=23 + k, d=23)[kind]}")
        sr, so, im = dict(q=(16, 0, 128 * k), k=(20, "s66" if k else 0, 0), v=(24, 0, 256 * k), o=(92, 0, 0), d=(96, 0, 0))[kind]
        return [u, BLD(1, "a200", "v31", f"s[{sr}:{sr+3}]", so, im, "t")]
    def stash(i, v): A(V("v_accvgpr_write_b32", f"a{ST+i}", v))
    A(V("v_lshrrev_b32", "v19", 2, "v0")); A(V("v_and_b32", "v19", 4, "v19")); A(V("v_xor_b32", "v19", "v28", "v19")); A(V("v_lshlrev_b32", "v19", 4, "v19"))
    A(S("s_mul_i32", "s61", "s56", 56 * 8192))
    A(V("v_lshl_add_u32", "v16", "v27", 13, "v19")); A(V("v_add_u32", "v16", "s61", "v16"))
    for q in range(4):
        stash(q, "v16")
        if q < 3: A(V("v_add_u32", "v16", 65536 - 1024, "v16"))
    A(S("s_lshl_b32", "s61", "s56", 7))
    A(V("v_lshlrev_b32", "v16", 9, "v27")); A(V("v_add_u32", "v16", "s61", "v16"))
    A(V("v_add_u32", "v17", "v16", "v30")); stash(4, "v17"); A(V("v_add_u32", "v17", 6144, "v17")); stash(6, "v17")
    A(V("v_add_u32", "v17", "v16", "v31")); A(V("v_add_u32", "v17", 3072, "v17")); stash(5, "v17"); A(V("v_add_u32", "v17", 6144, "v17")); stash(7, "v17")
    A(S("s_lshl_b32", "s61", "s56", 15))
    A(V("v_lshl_add_u32", "v16", "v27", 9, "v19")); A(V("v_add_u32", "v16", "s61", "v16"))
    for q in range(4):
        stash(8 + q, "v16")
        if q < 3: A(V("v_add_u32", "v16", 3072, "v16"))
    A(V("v_lshrrev_b32", "v20", 5, "v0")); A(V("v_bfe_u32", "v21", "v0", 4, 1)); A(V("v_bfe_u32", "v22", "v0", 2, 2)); A(V("v_and_b32", "v23", 3, "v0"))
    A(V("v_lshlrev_b32", "v16", 7, "v22")); A(V("v_lshrrev_b32", "v17", 1, "v22")); A(V("v_lshl_add_u32", "v16", "v17", 6, "v16")); A(V("v_lshl_add_u32", "v16", "v21", 5, "v16"))
    A(V("v_lshl_add_u32", "v17", "v20", 9, "v16")); A(V("v_lshl_add_u32", "v17", "v23", 3, "v17")); stash(18, "v17")
    A(V("v_xor_b32", "v17", 64, "v17")); stash(19, "v17")
    A(V("v_and_b32", "v18", 1, "v23")); A(V("v_lshlrev_b32", "v18", 1, "v18")); A(V("v_lshrrev_b32", "v17", 1, "v23")); A(V("v_or_b32", "v18", "v18", "v17"))
    A(V("v_lshl_add_u32", "v17", "v20", 10, "v16")); A(V("v_lshl_add_u32", "v17", "v18", 3, "v17")); stash(12, "v17")
    A(V("v_xor_b32", "v17", 64, "v17")); stash(13, "v17")
    A(V("v_lshl_add_u32", "v17", "v20", 3, "v22")); A(V("v_mul_u32_u24", "v17", 224, "v17")); A(V("v_lshl_add_u32", "v17", "v23", 3, "v17"))
    A(V("v_mul_u32_u24", "v18", 16512, "v21")); A(V("v_add_u32", "v25", "v17", "v18"))
    A(V("v_bfe_u32", "v16", "v0", 3, 2)); A(V("v_lshlrev_b32", "v16", 10, "v16")); A(V("v_lshl_add_u32", "v16", "v28", 7, "v16"))
    A(V("v_bfe_u32", "v17", "v0", 1, 3)); A(V("v_xor_b32", "v17", "v17", "v20")); A(V("v_lshl_add_u32", "v16", "v17", 4, "v16"))
    A(S("s_add_u32", "s61", "s57", SLOT))
    for sp in range(4):
        A(V("v_xor_b32", "v17", 32 * sp, "v16")); stash(14 + sp, "v17"); A(V("v_add_u32", f"v{8+sp}", "s61", "v17"))
    A(S("s_mul_i32", "s61", "s56", NKAP * 1024)); A(V("v_lshlrev_b32", "v24", 4, "v0")); A(V("v_add_u32", "v24", "s61", "v24"))
    A(V("v_mov_b32", "v26", "0x3f803f80"))
    for r in (12, 13, 14, 15): A(V("v_mov_b32", f"v{r}", 0))
    setup = c; c = head; A = c.append; E = c.extend
    per = -(-len(setup) // (len(xd) - 4))
    sp_ = 0
    for k, x in enumerate(xd):
        E(x)
        if k >= 3:
            e_ = min(sp_ + per, len(setup))
            while e_ < len(setup) and setup[e_].t.split()[0] in ("s_addc_u32", "s_cselect_b32"): e_ += 1
            E(setup[sp_:e_]); sp_ = e_
    E(setup[sp_:])
    for q in range(7): A(V("v_mov_b32", f"v{1+q}", f"v{248+q}"))
    for x in dma_stage(0): E(x)
    E(STAMP(1))
    xa = [AReg(8 + i) for i in range(4)]
    def xread(g):
        A(WAITV([f"x{g}"]))
        for sp in range(4):
            pre, off = xa[sp].at(XOFF(g) - SLOT); E(pre)
            A(DSR("ds_read_b128", rs("v", X0 + 16 * g + 4 * sp, 4), f"v{8+sp}", off, tag=("x", g, sp)))
    def stats(g):
        A(WAITL([("x", g, 3)]))
        for i in range(16):
            r = X0 + 16 * g + i
            A(V("v_dot2_f32_bf16", f"v{12 + (i & 1)}", f"v{r}", "v26", f"v{12 + (i & 1)}"))
            A(V("v_dot2_f32_bf16", f"v{14 + (i & 1)}", f"v{r}", f"v{r}", f"v{14 + (i & 1)}"))
    xread(0); E(STAMP(2))
    for g in range(1, 7):
        xread(g); stats(g - 1)
        if g == 2:
            for x in dma_stage(1): E(x)
        if g == OPT["s2at"]:
            for x in dma_stage(2): E(x)
    E(STAMP(3))
    stats(6)
    A(V("v_mov_b32", "v8", "v25"))
    A(V("v_add_f32", "v12", "v12", "v13")); A(V("v_add_f32", "v14", "v14", "v15"))
    A(V("v_mov_b32", "v13", "v12")); A(V("v_mov_b32", "v15", "v14"))
    A(V("v_permlane32_swap_b32", "v12", "v13")); A(V("v_permlane32_swap_b32", "v14", "v15"))
    A(V("v_add_f32", "v12", "v12", "v13")); A(V("v_add_f32", "v14", "v14", "v15"))
    A(V("v_mul_f32", "v13", hex(f2u(1 / 448.)), "v12"))
    A(V("v_mul_f32", "v14", hex(f2u(1 / 448.)), "v14"))
    A(V("v_fma_f32", "v14", "-v13", "v13", "v14")); A(V("v_max_f32", "v14", 0, "v14"))
    A(V("v_add_f32", "v14", hex(f2u(1e-5)), "v14")); A(V("v_rsq_f32", "v12", "v14"))
    A(V("v_mul_f32", "v12", hex(f2u(CSC)), "v12"))
    A(V("v_mul_f32", "v13", "v13", "v12")); A(V("v_sub_f32", "v13", 0, "v13"))
    A(V("v_mov_b32", "v14", 0)); A(V("v_mov_b32", "v15", 0))
    A(WAITV([0])); A(BAR())
    pro = c

    mf = []; reads = []
    D = OPT["D"]
    rstream = []; bar = {}
    state = dict(stage=0)
    def ring(i): return RING + 4 * (i % 8)
    def add(stage, rd_fn, d, b, cc, pre=None):
        i = len(mf)
        if stage != state["stage"]:
            it = Item([WAITV([stage]), BAR()], after=i - D, before=i); rstream.append(it); bar[stage] = it; state["stage"] = stage
        if pre: rstream.append(Item(pre, after=i - D, before=i))
        ins = rd_fn(ring(i), i)
        rstream.append(Item(ins, after=i - D, before=max(i - 1, 0)))
        mf.append(MFMA(d, rs("a", ring(i), 4), b, cc, need=[x.tag for x in ins if x.k == "dsr"]))
    def tr2(ar, a0, a1):
        def f(rg, i):
            p0, o0 = ar.at(a0); p1, o1 = ar.at(a1); assert not p1
            return p0 + [DSR("ds_read_b64_tr_b16", rs("a", rg, 2), f"v{ar.v}", o0, tag=(i, 0)), DSR("ds_read_b64_tr_b16", rs("a", rg + 2, 2), f"v{ar.v}", o1, tag=(i, 1))]
        return f
    def unst(dst, i): return V("v_accvgpr_read_b32", f"v{dst}", f"a{ST+i}")
    ga = AReg(8)
    for s in range(28):
        n, ks = s >> 2, s & 3
        for tt in range(7):
            a0 = (n % 5) * SLOT + (ks >> 1) * 8192 + 16 * (ks & 1) * 224 + 32 * tt
            d = rs("a", 16 * tt, 16)
            add(n, tr2(ga, a0, a0 + 4 * 224), d, rs("v", X0 + 4 * s, 4), "0" if s == 0 else d)
    iWQ = len(mf)
    wa = [AReg(8), AReg(9)]
    for p in range(4):
        for s in range(28):
            n, ks = 7 + 2 * p + s // 14, s % 14
            for th in range(2):
                a0 = (n % 5) * SLOT + ks * 2048
                d = rs("v", (R1 if p & 1 else R0) + 16 * th, 16)
                add(n, tr2(wa[th], a0, a0 + 512), d, rs("v", X0 + 4 * s, 4), "0" if s == 0 else d,
                    pre=[unst(8, 12), unst(9, 13)] if (p, s, th) == (0, 0, 0) else None)
    iS = len(mf)
    ka = [AReg(8 + i) for i in range(4)]
    for j in range(16):
        n = 15 + (j >> 1)
        for ks in range(16):
            a0 = (n % 5) * SLOT + (j & 1) * 16384 + (ks >> 2) * 4096
            def f(rg, i, a0=a0, ks=ks):
                p0, o0 = ka[ks & 3].at(a0)
                return p0 + [DSR("ds_read_b128", rs("a", rg, 4), f"v{8 + (ks & 3)}", o0, tag=(i, 0))]
            d = rs("v", sbuf(j), 16)
            add(n, f, d, rs("v", QF(ks), 4), d if ks else ("0" if j < 2 else rs("v", CIN, 16)),
                pre=[unst(8 + i, 14 + i) for i in range(4)] if (j, ks) == (0, 0) else None)
    iPV = len(mf)
    va = [AReg(8), AReg(9)]
    def oacc(T): return (("a", 32 * ((T >> 1) & 1) + 16 * (T & 1)) if T < 6 else ("v", CIN if T == 6 else SA[1]))
    olast = {}; ofirst = {}
    for qd in range(4):
        order = [(kap, th) for kap in range(32) for th in range(2)] if qd < 3 else [(kap, th) for th in range(2) for kap in range(32)]
        for kap, th in order:
            n = 23 + 2 * qd + (kap >> 4)
            a0 = (n % 5) * SLOT + (kap & 15) * 2048
            k_, b_ = oacc(2 * qd + th); d = rs(k_, b_, 16)
            ofirst.setdefault(2 * qd + th, len(mf)); olast[2 * qd + th] = len(mf)
            add(max(n, state["stage"]), tr2(va[th], a0, a0 + 1024), d, rs("v", PF(kap), 4), d if kap else "0",
                pre=[unst(8, 18), unst(9, 19)] if (qd, kap, th) == (0, 0, 0) else None)
    dstream = []
    for n in (3, 4):
        for k, ins in enumerate(dma_stage(n)): dstream.append(Item(ins, after=(n - 3) * 14 + 2 * k - 1, before=bar[n - 1].after))
    for n in range(5, 31):
        if n in (7, 15, 23):
            base = {7: 0, 15: 4, 23: 8}[n]
            dstream.append(Item([unst(1 + q, base + q) for q in range(4)], dep=bar[n - 3]))
        for k, ins in enumerate(dma_stage(n)):
            dstream.append(Item(ins, dep=bar[n - 3], lag=k * OPT["dma_gap"] if k else 0, before=bar[n - 1].after))
    vs = []
    def P(ins, after=-1, before=10**9):
        for x in ins: vs.append(Item(x, after=after, before=before))
    for s in range(28):
        for j in range(4):
            r = X0 + 4 * s + j; t0, t1 = (16, 17) if j & 1 else (18, 19)
            P([V("v_lshlrev_b32", f"v{t0}", 16, f"v{r}"), V("v_and_b32", f"v{t1}", "s67", f"v{r}"),
               V("v_fma_f32", f"v{t0}", f"v{t0}", "v12", "v13"), V("v_fma_f32", f"v{t1}", f"v{t1}", "v12", "v13"),
               V("v_cvt_pk_bf16_f32", f"v{r}", f"v{t0}", f"v{t1}")], before=7 * s)
    def qconv(p):
        rb = R1 if p & 1 else R0
        aft = iWQ + 56 * (p + 1) + 1
        for f in range(4):
            ks = 4 * p + f
            bef = (iWQ + 56 * (p + 2)) if p < 2 else (iS if p == 2 else iS + ks)
            P([V("v_cvt_pk_bf16_f32", f"v{QF(ks)+j}", f"v{rb + 8*f + 2*j}", f"v{rb + 8*f + 2*j + 1}") for j in range(4)], after=aft, before=min(bef, iS + ks))
    def guepi(tt):
        dq = 16 + 4 * (tt & 1)
        for j in range(4):
            P([V("v_accvgpr_read_b32", "v26", f"a{16*tt + 2*j}"), V("v_accvgpr_read_b32", "v27", f"a{16*tt + 8 + 2*j}"),
               V("v_accvgpr_read_b32", "v28", f"a{16*tt + 2*j + 1}"), V("v_accvgpr_read_b32", "v29", f"a{16*tt + 8 + 2*j + 1}"),
               V("v_mul_f32", "v26", "v26", "v27"), V("v_mul_f32", "v28", "v28", "v29"),
               V("v_cvt_pk_bf16_f32", f"v{dq+j}", "v26", "v28")], after=iWQ + 1, before=iPV)
        if tt == 4: P([S("s_add_u32", "s71", "s71", 4096)])
        P([BST(4, rs("v", dq, 4), "v24", "s[28:31]", "s71", (tt & 3) * 1024, OPT["st_mods"])])
    ts = []
    for spec in OPT["tp"].split(","):
        if spec:
            for x in touch(spec[0], int(spec[1])): ts.append(Item(x, after=int(spec[3:]), before=int(spec[3:]) + 8))
    for tt in range(3): guepi(tt)
    qconv(0)
    for tt in range(3, 7): guepi(tt)
    qconv(1); qconv(2); qconv(3)
    for j in range(16):
        b = sbuf(j); aft = iS + 16 * j + 15 + 2
        nxt = [k for k in range(j + 1, 16) if sbuf(k) == b]
        bef = iS + 16 * nxt[0] if nxt else iPV + 4 * j
        if j == 15: bef = iPV + 4 * j
        if j == 0:
            ins = [V("v_max3_f32", "v30", f"v{b}", f"v{b+1}", f"v{b+2}")]
            for i in range(3, 15, 2): ins.append(V("v_max3_f32", "v30", "v30", f"v{b+i}", f"v{b+i+1}"))
            ins += [V("v_max_f32", "v30", "v30", f"v{b+15}"), V("v_mov_b32", "v31", "v30"), NOP(2), V("v_permlane32_swap_b32", "v30", "v31"), V("v_max_f32", "v30", "v30", "v31")]
            ins += [V("v_sub_f32", f"v{CIN+i}", 0, "v30") for i in range(16)]
            P(ins, after=aft, before=iS + 32)
        for i in range(0, 16, 2):
            ins = []
            if j < 2: ins += [V("v_sub_f32", f"v{b+i}", f"v{b+i}", "v30"), V("v_sub_f32", f"v{b+i+1}", f"v{b+i+1}", "v30")]
            ins += [V("v_exp_f32", f"v{b+i}", f"v{b+i}"), V("v_exp_f32", f"v{b+i+1}", f"v{b+i+1}"),
                    V("v_add_f32", "v14", "v14", f"v{b+i}"), V("v_add_f32", "v15", "v15", f"v{b+i+1}"),
                    V("v_cvt_pk_bf16_f32", f"v{PF(2*j) + (i >> 1)}", f"v{b+i}", f"v{b+i+1}")]
            P(ins, after=aft, before=bef)
    P([V("v_add_f32", "v14", "v14", "v15"), V("v_mov_b32", "v15", "v14"), NOP(2), V("v_permlane32_swap_b32", "v14", "v15"),
       V("v_add_f32", "v14", "v14", "v15"), V("v_rcp_f32", "v25", "v14"), V("v_cmp_ngt_f32", "vcc", hex(f2u(2.0 ** OPT["thr"])), "v14")])
    for T in range(8):
        k_, b_ = oacc(T); aft = min(olast[T] + 2, len(mf) - 1)
        bef = ofirst[T + 4] if T + 4 < 6 else 10**9
        for e in range(2):
            dq = 16 + 4 * e
            for j in range(4):
                r = b_ + 8 * e + 2 * j; t0, t1 = (26, 27) if j & 1 else (28, 29)
                if k_ == "a":
                    ins = [V("v_accvgpr_read_b32", f"v{t0}", f"a{r}"), V("v_accvgpr_read_b32", f"v{t1}", f"a{r+1}"),
                           V("v_mul_f32", f"v{t0}", f"v{t0}", "v25"), V("v_mul_f32", f"v{t1}", f"v{t1}", "v25")]
                else:
                    ins = [V("v_mul_f32", f"v{t0}", f"v{r}", "v25"), V("v_mul_f32", f"v{t1}", f"v{r+1}", "v25")]
                P(ins + [V("v_cvt_pk_bf16_f32", f"v{dq+j}", f"v{t0}", f"v{t1}")], after=aft, before=bef)
            fi = 2 * T + e
            if fi and fi % 4 == 0: P([S("s_add_u32", "s70", "s70", 4096)])
            P([BST(4, rs("v", dq, 4), "v24", "s[28:31]", "s70", (fi & 3) * 1024, OPT["st_mods"])])
    ss = [Item(STAMP(4 + k), after=ix, before=ix + 1) for k, ix in enumerate([0, iWQ, iS, iPV, len(mf) - 2])] if OPT["stamp"] else []
    main = schedule(mf, [rstream, dstream, vs, ts, ss], budget=OPT["budget"])
    code = resolve_waits(pro + main)
    code, nn = fix_hazards(code)
    code += [RAW("s_cbranch_vccz K1_FIN")] + k1_slow() + [LABEL("K1_FIN")] + fix_hazards(STAMP_OUT(9, 0))[0]
    check_scc(code)
    code.append(LABEL("K1_END"))
    print(f"K1: {len(code)} instrs, {len(mf)} mfma, {nn} nops inserted", file=sys.stderr)
    return code

def k2():
    c = []; A = c.append; E = c.extend
    PD = 12
    A(RAW("s_cmp_ge_u32 s2, 224")); A(RAW("s_cbranch_scc1 K2_END"))
    if OPT["scr"]:
        E([S("s_and_b32", "s3", "s2", 7), S("s_lshl_b32", "s3", "s3", 3), S("s_bfe_u32", "s4", "s2", hex((3 << 16) | 3)), S("s_or_b32", "s3", "s3", "s4"),
           S("s_andn2_b32", "s4", "s2", 63), S("s_or_b32", "s3", "s3", "s4"), RAW("s_cmp_lt_u32 s2, 192"), S("s_cselect_b32", "s2", "s3", "s2")])
    E(STAMP(0))
    A(RAW("s_load_dwordx16 s[32:47], s[0:1], 0")); A(RAW("s_load_dwordx8 s[48:55], s[0:1], 64"))
    A(V("v_lshrrev_b32", "v26", 6, "v0")); A(V("v_and_b32", "v0", 63, "v0"))
    A(V("v_readfirstlane_b32", "s56", "v26"))
    A(S("s_and_b32", "s3", "s2", 7)); A(S("s_lshr_b32", "s4", "s2", 3))
    A(S("s_mul_i32", "s5", "s4", 9363)); A(S("s_lshr_b32", "s5", "s5", 16))
    A(S("s_mul_i32", "s6", "s5", 7)); A(S("s_sub_u32", "s6", "s4", "s6"))
    A(S("s_lshl_b32", "s3", "s3", 2)); A(S("s_add_u32", "s5", "s5", "s3"))
    A(S("s_mul_i32", "s57", "s56", PD * 2048))
    A(V("v_lshrrev_b32", "v27", 3, "v0")); A(V("v_and_b32", "v28", 7, "v0"))
    A(V("v_lshrrev_b32", "v19", 2, "v0")); A(V("v_and_b32", "v19", 4, "v19")); A(V("v_xor_b32", "v19", "v28", "v19")); A(V("v_lshlrev_b32", "v19", 4, "v19"))
    A(V("v_mul_u32_u24", "v1", 896, "v27")); A(V("v_add_u32", "v1", "v1", "v19"))
    for q in range(1, 4): A(V("v_add_u32", f"v{1+q}", 6144, f"v{q}"))
    A(V("v_lshlrev_b32", "v5", 4, "v0")); A(V("v_add_u32", "v6", NKAP * 1024, "v5"))
    A(S("s_mul_i32", "s62", "s56", 28 * 16 * 896))
    A(S("s_mul_i32", "s63", "s56", 28 * 1024)); A(S("s_add_u32", "s63", "s63", 256 * 1024))
    A(RAW("s_waitcnt lgkmcnt(0)"))
    A(S("s_lshl_b32", "s61", "s6", 7)); E(srd_off(8, 48, "s61", 1792 * 896)); E(srd_off(12, 40, "s61", 4096 * 896))
    A(S("s_mul_i32", "s61", "s5", 2 * NKAP * 1024)); E(srd_off(16, 54, "s61", 64 * NKAP * 1024))
    BR = 64
    def issue(j):
        if j >= 46: return
        if j == 14:
            A(S("s_mul_i32", "s62", "s56", 64 * 16 * 896)); A(S("s_lshl_b32", "s63", "s56", 16))
        A(S("s_add_u32", "m0", "s57", (j % (PD // 2)) * 4096))
        sr = "s[8:11]" if j < 14 else "s[12:15]"
        for q in range(4): A(DMA(f"v{1+q}", sr, "s62", q * 1024, ("a", j), OPT["k2a"]))
        for u in range(2):
            st = 2 * j + u
            for rb in range(2):
                A(BLD(4, rs("v", BR + (st % PD) * 8 + 4 * rb, 4), f"v{5+rb}", "s[16:19]", "s63", u * 1024, ("b", j), OPT["k2b"]))
        A(S("s_add_u32", "s62", "s62", 32 * 896)); A(S("s_add_u32", "s63", "s63", 2048))
    for j in range(PD // 2): issue(j)
    E(srd(20, "s32", "s33", hex(2048 * 896))); E(srd(24, "s50", "s51", hex(2048 * 896)))
    A(V("v_lshrrev_b32", "v20", 5, "v0")); A(V("v_bfe_u32", "v21", "v0", 4, 1)); A(V("v_bfe_u32", "v22", "v0", 2, 2)); A(V("v_and_b32", "v23", 3, "v0"))
    A(V("v_lshlrev_b32", "v16", 7, "v22")); A(V("v_lshrrev_b32", "v17", 1, "v22")); A(V("v_lshl_add_u32", "v16", "v17", 6, "v16"))
    A(V("v_lshl_add_u32", "v16", "v20", 9, "v16")); A(V("v_and_b32", "v17", 1, "v23")); A(V("v_lshl_add_u32", "v16", "v17", 5, "v16"))
    A(V("v_lshl_add_u32", "v16", "v21", 4, "v16")); A(V("v_lshrrev_b32", "v17", 1, "v23")); A(V("v_lshl_add_u32", "v16", "v17", 3, "v16"))
    A(V("v_xor_b32", "v17", 64, "v16")); A(V("v_add_u32", "v8", "s57", "v16")); A(V("v_add_u32", "v9", "s57", "v17"))
    RB = 4 * PD * 2048
    A(S("s_lshl_b32", "s61", "s56", 14)); A(S("s_add_u32", "s61", "s61", RB)); A(V("v_add_u32", "v10", "s61", "v5"))
    A(S("s_lshl_b32", "s61", "s56", 12)); A(S("s_add_u32", "s61", "s61", RB)); A(V("v_add_u32", "v11", "s61", "v5"))
    A(S("s_lshr_b32", "s61", "s56", 1)); A(S("s_lshl_b32", "s61", "s61", 5)); A(S("s_lshl_b32", "s64", "s5", 6)); A(S("s_add_u32", "s61", "s61", "s64"))
    A(S("s_mul_i32", "s61", "s61", 896)); A(S("s_lshl_b32", "s64", "s6", 7)); A(S("s_add_u32", "s61", "s61", "s64"))
    A(S("s_and_b32", "s64", "s56", 1)); A(S("s_lshl_b32", "s64", "s64", 6)); A(S("s_add_u32", "s61", "s61", "s64"))
    A(V("v_and_b32", "v16", 31, "v0")); A(V("v_mul_u32_u24", "v16", 896, "v16")); A(V("v_lshl_add_u32", "v16", "v20", 5, "v16")); A(V("v_add_u32", "v7", "s61", "v16"))
    AF = 32
    XR = 48; G = 160; PR = 176
    A(BLD(4, rs("v", XR, 4), "v7", "s[20:23]", 0, 0, "x")); A(BLD(4, rs("v", XR + 4, 4), "v7", "s[20:23]", 0, 16, "x"))
    def rd(st):
        A(WAITV([("a", st >> 1)]))
        for cb in range(2):
            r = AF + (st & 1) * 8 + 4 * cb; o = (st % PD) * 2048
            A(DSR("ds_read_b64_tr_b16", rs("v", r, 2), f"v{8+cb}", o, tag=(st, cb, 0))); A(DSR("ds_read_b64_tr_b16", rs("v", r + 2, 2), f"v{8+cb}", o + 1024, tag=(st, cb, 1)))
    def dump(base, tg):
        for t in range(4):
            for q in range(4): A(DSW("ds_write_b128", "v10", rs("a", base + 16 * t + 4 * q, 4), t * 4096 + q * 1024, tag=(tg, t, q)))
        A(WAITL()); A(BAR())
    def gather(tg, dst):
        for sw in range(4):
            for q in range(4): A(DSR("ds_read_b128", rs("v", PR + 16 * sw + 4 * q, 4), "v11", sw * 16384 + q * 1024, tag=(tg, "r", sw, q)))
        A(WAITL())
        for i in range(16):
            A(V("v_add_f32", f"v{PR+i}", f"v{PR+i}", f"v{PR+16+i}")); A(V("v_add_f32", f"v{PR+32+i}", f"v{PR+32+i}", f"v{PR+48+i}"))
        for i in range(16): A(V("v_add_f32", f"v{dst+i}", f"v{PR+i}", f"v{PR+32+i}"))
    E(STAMP(1))
    rd(0)
    for st in range(92):
        if st in (1, 28, 60): E(STAMP({1: 2, 28: 3, 60: 4}[st]))
        if st + 1 < 92: rd(st + 1)
        A(WAITV([("b", st >> 1)]))
        ab = 0 if st < 28 else 64
        for rb in range(2):
            for cb in range(2):
                d = rs("a", ab + 16 * (2 * rb + cb), 16)
                A(MFMA(d, rs("v", AF + (st & 1) * 8 + 4 * cb, 4), rs("v", BR + (st % PD) * 8 + 4 * rb, 4), "0" if st in (0, 28) else d, need=[(st, cb, 0), (st, cb, 1)]))
        if st & 1: issue((st >> 1) + PD // 2)
        if st == 29: dump(0, "f")
        if st == 31:
            gather("f", G)
            for i in range(16):
                r = f"v{G+i}"; t = f"v{PR+i}"
                A(V("v_mul_f32", r, hex(f2u(1.0 / (CSC * CSC))), r)); A(V("v_mul_f32", t, hex(f2u(-LOG2E)), r)); A(V("v_exp_f32", t, t))
            for i in range(16):
                t = f"v{PR+i}"; A(V("v_add_f32", t, 1.0, t)); A(V("v_rcp_f32", t, t))
            for i in range(16): A(V("v_mul_f32", f"v{G+i}", f"v{G+i}", f"v{PR+i}"))
            A(BAR())
    E(STAMP(5))
    dump(64, "s")
    E(STAMP(6))
    gather("s", PR)
    A(WAITV(["x"]))
    for j in range(8):
        A(V("v_lshlrev_b32", "v16", 16, f"v{XR+j}")); A(V("v_and_b32", "v17", "0xffff0000", f"v{XR+j}"))
        A(V("v_fma_f32", "v16", f"v{PR+2*j}", f"v{G+2*j}", "v16")); A(V("v_fma_f32", "v17", f"v{PR+2*j+1}", f"v{G+2*j+1}", "v17"))
        A(V("v_cvt_pk_bf16_f32", f"v{XR+j}", "v16", "v17"))
    A(BST(4, rs("v", XR, 4), "v7", "s[24:27]", 0, 0)); A(BST(4, rs("v", XR + 4, 4), "v7", "s[24:27]", 0, 16))
    E(STAMP_OUT(7, 65536 * 4))
    code = resolve_waits(c, look=3)
    code, nn = fix_hazards(code)
    check_scc(code)
    code.append(LABEL("K2_END"))
    print(f"K2: {len(code)} instrs, {nn} nops", file=sys.stderr)
    return code

def kd(name, vg, acc):
    return f""".p2align 6
.amdhsa_kernel {name}
  .amdhsa_next_free_vgpr {vg}
  .amdhsa_next_free_sgpr 102
  .amdhsa_accum_offset {acc}
  .amdhsa_group_segment_fixed_size 0
  .amdhsa_kernarg_size 96
  .amdhsa_user_sgpr_count 2
  .amdhsa_user_sgpr_kernarg_segment_ptr 1
  .amdhsa_system_sgpr_workgroup_id_x 1
.end_amdhsa_kernel
"""
def build():
    ref = open(f"cdna_kernels/{NAME}.s.ref").read().split("\n")
    head = [l for l in ref if l.startswith(";") and "@launch" not in l and "Override" not in l and "grid=ceil" not in l]
    s = "\n".join(head) + "\n"
    s += "; @launch kernel=attn_kernel grid=(256,1,1) block=(256,1,1) lds=163840\n"
    s += "; @launch kernel=proj_kernel grid=(224,1,1) block=(256,1,1) lds=163840\n"
    s += '.amdgcn_target "amdgcn-amd-amdhsa--gfx950"\n.text\n'
    for nm, fn in (("attn_kernel", k1), ("proj_kernel", k2)):
        s += f".globl {nm}\n.p2align 8\n.type {nm},@function\n{nm}:\n" + text(fn()) + "  s_endpgm\n"
    s += '.section .rodata,"a"\n' + kd("attn_kernel", 512, 256) + kd("proj_kernel", 384, 256)
    return s
if __name__ == "__main__":
    for a in sys.argv[2:]:
        k, v = a.split("="); OPT[k] = type(OPT[k])(v)
    open(sys.argv[1], "w").write(build())
```

```python
import re

def R(kind, base, n=1):
    return [(kind, base + i) for i in range(n)]
def rs(kind, base, n=1):
    return f"{kind}{base}" if n == 1 else f"{kind}[{base}:{base+n-1}]"

class I:
    __slots__ = ("t", "k", "rd", "wr", "cost", "tag", "need", "srcc", "stage", "data")
    def __init__(s, t, k, rd=(), wr=(), cost=1, tag=None, need=None, srcc=(), stage=None, data=()):
        s.t, s.k, s.rd, s.wr, s.cost, s.tag, s.need, s.srcc, s.stage, s.data = t, k, list(rd), list(wr), cost, tag, need, list(srcc), stage, list(data)
    def __repr__(s): return s.t

_opre = re.compile(r"^(-?)(?:abs\()?([vas])(\d+|\[(\d+):(\d+)\])\)?$")
def regs_of(op):
    m = _opre.match(op.strip())
    if not m: return []
    k = m.group(2)
    if m.group(4) is not None: return R(k, int(m.group(4)), int(m.group(5)) - int(m.group(4)) + 1)
    return [(k, int(m.group(3)))]

TRANS = ("v_exp_f32", "v_rcp_f32", "v_rsq_f32", "v_log_f32", "v_sqrt_f32")
def V(op, dst, *src, mods=""):
    rd = []
    for x in src: rd += regs_of(str(x))
    wr = regs_of(dst)
    if op.startswith("v_fmac") or op.startswith("v_dot2c"): rd += wr
    if op.startswith("v_permlane32_swap"):
        wr = wr + regs_of(src[0]); rd += regs_of(dst)
    k = "trans" if op in TRANS else ("perm" if "permlane" in op else ("dot" if "dot2" in op else "valu"))
    if op.startswith("v_cmp"): wr = wr + ([("s", 106), ("s", 107)] if dst == "vcc" else [])
    if op.startswith("v_cndmask") and len(src) == 3 and src[2] == "vcc": rd += [("s", 106), ("s", 107)]
    if op in ("v_readfirstlane_b32", "v_readlane_b32"): k = "rfl"
    return I(f"{op} {dst}, " + ", ".join(str(x) for x in src) + mods, k, rd, wr, cost=2 if k == "trans" else 1)
def S(op, dst, *src):
    rd = []
    for x in src: rd += regs_of(str(x))
    wr = regs_of(dst) if dst != "m0" else [("m0", 0)]
    return I(f"{op} {dst}, " + ", ".join(str(x) for x in src) if src else f"{op} {dst}", "salu", rd, wr)
def RAW(t, k="other", cost=1): return I(t, k, cost=cost)
def NOP(n): return I(f"s_nop {n-1}", "nop", cost=n, data=[n])
def MFMA(d, a, b, c, need=None):
    rc = regs_of(c)
    return I(f"v_mfma_f32_32x32x16_bf16 {d}, {a}, {b}, {c}", "mfma", regs_of(a) + regs_of(b) + rc, regs_of(d), cost=0, need=need, srcc=rc)
def DSR(op, dst, addr, off, tag=None):
    assert 0 <= off <= 65535, off
    return I(f"{op} {dst}, {addr} offset:{off}", "dsr", regs_of(addr), regs_of(dst), tag=tag)
def DSW(op, addr, src, off, tag=None):
    assert 0 <= off <= 65535, off
    return I(f"{op} {addr}, {src} offset:{off}", "dsw", regs_of(addr) + regs_of(src), [], tag=tag, cost=2)
def DMA(voff, srd, soff, off, stage, mods=""):
    assert 0 <= off <= 4095
    return I(f"buffer_load_dwordx4 {voff}, {srd}, {soff} offen offset:{off}{mods} lds", "dma", regs_of(voff) + regs_of(srd) + regs_of(str(soff)) + [("m0", 0)], [], cost=3, stage=stage)
def BLD(n, dst, voff, srd, soff, off, stage, mods=""):
    assert 0 <= off <= 4095
    op = {1: "buffer_load_dword", 2: "buffer_load_dwordx2", 4: "buffer_load_dwordx4"}[n]
    return I(f"{op} {dst}, {voff}, {srd}, {soff} offen offset:{off}{mods}", "vld", regs_of(voff) + regs_of(srd) + regs_of(str(soff)), regs_of(dst), cost=3, stage=stage)
def BST(n, src, voff, srd, soff, off, mods=""):
    assert 0 <= off <= 4095
    op = {1: "buffer_store_dword", 2: "buffer_store_dwordx2", 4: "buffer_store_dwordx4"}[n]
    return I(f"{op} {src}, {voff}, {srd}, {soff} offen offset:{off}{mods}", "vst", regs_of(voff) + regs_of(srd) + regs_of(str(soff)) + regs_of(src), [], cost=3, data=regs_of(src), stage="st")
def WAITV(stages):
    return I("s_waitcnt vmcnt(?)", "waitv", need=set(stages))
def WAITL(tags=None):
    return I("s_waitcnt lgkmcnt(?)", "waitl", need=tags)
def BAR(): return I("s_barrier", "bar", cost=2)
def LABEL(n): return I(f"{n}:", "label", cost=0)

class Item:
    __slots__ = ("ins", "after", "before", "dep", "lag", "gap")
    def __init__(s, ins, after=-1, before=10**9, dep=None, lag=0):
        s.ins = ins if isinstance(ins, list) else [ins]
        s.after, s.before, s.dep, s.lag, s.gap = after, before, dep, lag, None
    @property
    def cost(s): return sum(i.cost for i in s.ins)

def schedule(mf, streams, budget=6, wait_reserve=0.5):
    out = []
    pos = [0] * len(streams)
    def ready(it, g):
        if it.after > g: return False
        if it.dep is not None and (it.dep.gap is None or it.dep.gap + it.lag > g): return False
        return True
    carry = 0.0
    for g in range(-1, len(mf)):
        if g >= 0: out.append(mf[g])
        last = (g == len(mf) - 1)
        b = budget - wait_reserve + carry
        used = 0
        while True:
            best = None
            for si, st in enumerate(streams):
                if pos[si] >= len(st): continue
                it = st[pos[si]]
                if not ready(it, g) and not last: continue
                if last and it.dep is not None and it.dep.gap is None: continue
                dl = min(x.before for x in st[pos[si]:pos[si] + 40])
                must = dl <= g + 1 or last
                if not must and used + it.cost > b + 0.01: continue
                key = (0 if must else 1, dl, si)
                if best is None or key < best[0]: best = (key, si)
            if best is None: break
            si = best[1]; it = streams[si][pos[si]]; pos[si] += 1
            it.gap = g; out += it.ins; used += it.cost
        carry = min(max(b - used, -3), 0.5) if used else 0.5
        for si, st in enumerate(streams):
            if pos[si] < len(st) and min(x.before for x in st[pos[si]:pos[si] + 40]) <= g + 1 and not last:
                raise RuntimeError(f"deadline miss at gap {g}: stream {si} item {st[pos[si]].ins} after={st[pos[si]].after} dep={st[pos[si]].dep and st[pos[si]].dep.ins}")
    for si, st in enumerate(streams):
        assert pos[si] == len(st), (si, st[pos[si]].ins)
    return out

def resolve_waits(code, look=1):
    out = []
    lds = []
    done = 0
    vm = []
    vdone = 0
    tagpos = {}
    mf_idx = [i for i, x in enumerate(code) if x.k == "mfma"]
    nxt = {mf_idx[j]: mf_idx[j + 1:j + 1 + look] for j in range(len(mf_idx))}
    for i, x in enumerate(code):
        if x.k in ("dsr", "dsw"):
            lds.append(x.tag); tagpos[x.tag] = len(lds); out.append(x); continue
        if x.k in ("dma", "vld", "vst"):
            vm.append(x.stage); out.append(x); continue
        if x.k == "waitv":
            p = max([j + 1 for j, s in enumerate(vm) if s in x.need], default=0)
            if p > vdone:
                n = len(vm) - p
                assert n <= 63, n
                out.append(I(f"s_waitcnt vmcnt({n})", "wait")); vdone = p
            continue
        if x.k == "waitl":
            p = len(lds) if x.need is None else max(tagpos[t] for t in x.need)
            if p > done:
                out.append(I(f"s_waitcnt lgkmcnt({min(len(lds) - p, 15)})", "wait")); done = max(p, len(lds) - 15) if len(lds) - p > 15 else p
            continue
        if x.k == "mfma" and x.need:
            p = max(tagpos[t] for t in x.need)
            if p > done:
                for j in nxt[i]:
                    nn = code[j].need
                    if nn and all(t in tagpos for t in nn):
                        q = max(tagpos[t] for t in nn)
                        if len(lds) - q >= 4: p = max(p, q)
                n = len(lds) - p
                if n > 15: n = 15
                out.append(I(f"s_waitcnt lgkmcnt({n})", "wait")); done = len(lds) - n
        out.append(x)
    return out

def fix_hazards(code):
    out = []
    def states(x): return x.data[0] if x.k == "nop" else (0 if x.k == "label" else 1)
    VAL = ("valu", "trans", "perm", "dot", "rfl")
    nins = 0
    for x in code:
        need = 0
        dist = 0
        rd, wr = set(x.rd), set(x.wr)
        for y in reversed(out[-40:]):
            req = 0
            ywr = set(y.wr)
            if y.k == "mfma":
                if x.k == "mfma":
                    if ywr & set(x.srcc) and not (set(x.srcc) == ywr): req = max(req, 10)
                    if ywr & (rd - set(x.srcc)): req = max(req, 12)
                    if ywr & wr and not (set(x.srcc) == ywr): req = max(req, 10)
                elif x.k in VAL or x.k in ("dsr", "dsw", "vld", "vst", "dma"):
                    if ywr & (rd | wr): req = max(req, 12)
                    if x.k in VAL and set(y.srcc) & wr: req = max(req, 7)
            elif y.k in VAL:
                if x.k == "mfma" and ywr & rd: req = max(req, 2)
                if y.k == "trans" and x.k in VAL and x.k != "trans" and ywr & rd: req = max(req, 1)
                if y.k == "trans" and x.k not in VAL and ywr & rd: req = max(req, 1)
                if x.k == "perm" and ywr & (rd | wr): req = max(req, 2)
                if x.k == "rfl" and ywr & rd: req = max(req, 1)
                if y.k == "dot" and ywr & (rd | wr) and not (x.k == "dot"): req = max(req, 3)
                if y.k == "dot" and x.k == "dot" and ywr & set(x.rd[:2]): req = max(req, 3)
                sw = {r for r in ywr if r[0] == "s"}
                if sw:
                    if x.k in ("dma", "vld", "vst") and sw & rd: req = max(req, 5)
                    if x.k in VAL and sw & rd: req = max(req, 2)
                    if x.k in ("salu", "other") and sw & rd: req = max(req, 4)
            elif y.k == "salu":
                if ("m0", 0) in ywr and x.k == "dma": req = max(req, 1)
            elif y.k == "vst":
                if set(y.data) & wr and len(y.data) >= 3: req = max(req, 2)
            if req > dist: need = max(need, req - dist)
            dist += states(y)
            if dist >= 13: break
        if need:
            out.append(NOP(need)); nins += 1
        out.append(x)
    return out, nins

def text(code): return "\n".join(("" if x.k == "label" else "  ") + x.t for x in code) + "\n"

def check_scc(code):
    last = None
    for x in code:
        op = x.t.split()[0]
        if op == "s_addc_u32":
            d = int(x.t.split()[1].strip(",")[1:])
            assert last and last.startswith(f"s_add_u32 s{d-1},"), (last, x.t)
        if op == "s_subb_u32":
            d = int(x.t.split()[1].strip(",")[1:])
            assert last and last.startswith(f"s_sub_u32 s{d-1},"), (last, x.t)
        if op in ("s_cselect_b32", "s_cbranch_scc0", "s_cbranch_scc1"):
            assert last and last.startswith(("s_cmp", "s_bitcmp")), (last, x.t)
        if op.startswith("s_") and op not in ("s_mov_b32", "s_mul_i32", "s_cselect_b32", "s_waitcnt", "s_barrier", "s_nop", "s_memtime", "s_memrealtime", "s_mov_b64", "s_setprio", "s_sleep", "s_getpc_b64") \
           and not op.startswith("s_load") and not op.startswith("s_cbranch") and not op.startswith("s_branch"):
            last = x.t

def schedule2(mf, head, tail_, streams, cap=6):
    out = []
    pos = [0] * len(streams)
    eff = []
    for st in streams:
        e = [0] * len(st); m = 10**9
        for k in range(len(st) - 1, -1, -1):
            m = min(m, st[k].before); e[k] = m
        eff.append(e)
    def ready(it, g):
        if it.after > g: return False
        if it.dep is not None and (it.dep.gap is None or it.dep.gap + it.lag > g): return False
        return True
    hist = []
    for g in range(-1, len(mf)):
        if g >= 0: out.append(mf[g])
        last = (g == len(mf) - 1)
        h, t = head.get(g, []), tail_.get(g, [])
        out += h
        used = sum(x.cost for x in h) + sum(x.cost for x in t)
        while True:
            best = None
            for si, st in enumerate(streams):
                if pos[si] >= len(st): continue
                it = st[pos[si]]
                dl = eff[si][pos[si]]
                must = dl <= g + 1 or last
                if must:
                    if it.dep is not None and it.dep.gap is None: continue
                    assert last or it.after <= g, (g, it.ins)
                elif not ready(it, g) or used + it.cost > cap: continue
                key = (0 if must else 1, dl, si)
                if best is None or key < best[0]: best = (key, si)
            if best is None: break
            si = best[1]; it = streams[si][pos[si]]; pos[si] += 1
            it.gap = g; out += it.ins; used += it.cost
        out += t
        hist.append(used)
        for si, st in enumerate(streams):
            assert last or pos[si] >= len(st) or eff[si][pos[si]] > g + 1, (g, si, st[pos[si]].ins)
    for si, st in enumerate(streams): assert pos[si] == len(st), (si, st[pos[si]].ins)
    return out, hist
```

```python
import sys, struct
from asmlib import *
NAME = "recurrent_scan__sliding_block_cached__glu_gated_bilinear__prompt"
def f2u(x): return struct.unpack("<I", struct.pack("<f", x))[0]
LOG2E = 1.4426950408889634
CSC = LOG2E / 16.0
NKAP = 368
OPT = dict(D=7, W=4, dc=3, gt=0, budget=6, st_mods=" sc1", dma_gap=4, stamp=0, touch=1, touch2=1, thr=30, tat=0, s2at=5, k2a="", k2b="", k1d="", scr=0, lf=2, k2bar=0, LA=2, xo=10, RD=3, LB=8, AK=0, silu=1, xat=160, fa=13, fb=7, ost="", tp="q0:30,q1:80,q2:130,q3:180,k0:234,k1:310,v0:390,v1:560,d0:600,o0:690,o1:740")
def STAMP(i):
    return ([I(f"s_memtime s[{72+2*i}:{73+2*i}]", "other", cost=1)] + ([I("s_memrealtime s[100:101]", "other")] if i == 0 else [])) if OPT["stamp"] else []
def STAMP_OUT(n, base):
    if not OPT["stamp"]: return []
    o = [RAW("s_waitcnt lgkmcnt(0) vmcnt(0)"), I(f"s_memtime s[{72+2*n}:{73+2*n}]", "other"), I("s_memrealtime s[62:63]", "other"), RAW("s_waitcnt lgkmcnt(0)")]
    o += [S("s_add_u32", "s4", "s54", hex((32 << 20) + base)), S("s_addc_u32", "s5", "s55", 0), S("s_mov_b32", "s6", 1 << 20), S("s_mov_b32", "s7", "0x20000")]
    o += [S("s_lshl_b32", "s3", "s2", 8), S("s_lshl_b32", "s61", "s56", 6), S("s_add_u32", "s3", "s3", "s61"), V("v_mov_b32", "v1", "s3")]
    for i in range(n + 1):
        o += [V("v_mov_b32", "v2", f"s{72+2*i}"), BST(1, "v2", "v1", "s[4:7]", 0, 4 * i)]
    o += [V("v_mov_b32", "v2", "s100"), BST(1, "v2", "v1", "s[4:7]", 0, 56), V("v_mov_b32", "v2", "s62"), BST(1, "v2", "v1", "s[4:7]", 0, 60)]
    return o


def srd(n, lo, hi, size):
    return [S("s_mov_b32", f"s{n}", lo), S("s_mov_b32", f"s{n+1}", hi), S("s_mov_b32", f"s{n+2}", size), S("s_mov_b32", f"s{n+3}", "0x20000")]
def srd_off(n, p, soff, total):
    return [S("s_add_u32", f"s{n}", f"s{p}", soff), S("s_addc_u32", f"s{n+1}", f"s{p+1}", 0),
            S("s_sub_u32", f"s{n+2}", hex(total), soff), S("s_mov_b32", f"s{n+3}", "0x20000")]

class AReg:
    def __init__(s, v): s.v, s.base = v, 0
    def at(s, a):
        pre = []
        if not (0 <= a - s.base <= 65535):
            nb = (a // 65536) * 65536
            pre.append(V("v_add_u32", f"v{s.v}", hex((nb - s.base) & 0xffffffff), f"v{s.v}"))
            s.base = nb
        return pre, a - s.base

X0 = 32; R0 = 144; R1 = 176; QF01 = 208; CIN = 240
SA = [160, 192, 128]
RING = 224
ST = 112
SLOT = 32768
def XOFF(g): return (1 + (g >> 1)) * SLOT + (g & 1) * 4096
def QF(ks):
    p = ks >> 2
    return (QF01 + 4 * ks) if p < 2 else ((R0 if p == 2 else R1) + 4 * (ks & 3))
def PF(kap):
    j = kap >> 1
    b = (X0 + 8 * j) if j < 14 else (SA[0] + 8 * (j - 14))
    return b + 4 * (kap & 1)
def sbuf(j): return SA[j % 3] if j < 12 else SA[j & 1]

def k1_slow():
    c = []; A = c.append; E = c.extend
    W = lambda t: A(RAW(t))
    KF = 32; SB = 96; PB = 112; VF = 120
    W("s_waitcnt vmcnt(0) lgkmcnt(0)"); A(NOP(8)); A(NOP(8))
    A(V("v_and_b32", "v1", 31, "v0")); A(V("v_lshrrev_b32", "v2", 5, "v0"))
    A(V("v_lshlrev_b32", "v3", 9, "v1")); A(V("v_lshl_add_u32", "v3", "v2", 4, "v3"))
    A(V("v_lshlrev_b32", "v4", 11, "v2")); A(V("v_lshl_add_u32", "v4", "v1", 1, "v4"))
    A(V("v_add_u32", "v5", 4096, "v4"))
    A(V("v_mov_b32", "v30", "0xff800000")); A(V("v_mov_b32", "v14", 0))
    for i in range(128): A(V("v_accvgpr_write_b32", f"a{i}", 0))
    def stile():
        for ks in range(16): A(BLD(4, rs("v", KF + 4 * ks, 4), "v3", "s[20:23]", "s62", 32 * ks, "z"))
        W("s_waitcnt vmcnt(0)")
        for ks in range(16): A(MFMA(rs("v", SB, 16), rs("v", KF + 4 * ks, 4), rs("v", QF(ks), 4), rs("v", SB, 16) if ks else "0"))
        A(NOP(8)); A(NOP(8))
    A(S("s_mov_b32", "s62", 0)); A(LABEL("K1_SL1")); A(NOP(8))
    stile()
    for i in range(0, 16, 2): A(V("v_max3_f32", "v30", "v30", f"v{SB+i}", f"v{SB+i+1}"))
    A(S("s_add_u32", "s62", "s62", 16384)); W("s_cmp_lt_u32 s62, 0x40000"); W("s_cbranch_scc1 K1_SL1")
    E([V("v_mov_b32", "v31", "v30"), NOP(2), V("v_permlane32_swap_b32", "v30", "v31"), V("v_max_f32", "v30", "v30", "v31")])
    A(S("s_mov_b32", "s62", 0)); A(LABEL("K1_SL2")); A(NOP(8))
    stile()
    for i in range(16):
        A(V("v_sub_f32", f"v{SB+i}", f"v{SB+i}", "v30")); A(V("v_exp_f32", f"v{SB+i}", f"v{SB+i}"))
    for i in range(16): A(V("v_add_f32", "v14", "v14", f"v{SB+i}"))
    for i in range(8): A(V("v_cvt_pk_bf16_f32", f"v{PB+i}", f"v{SB+2*i}", f"v{SB+2*i+1}"))
    for e in range(2):
        A(S("s_add_u32", "s63", "s62", 8192 * e))
        for T in range(8):
            r = VF + 4 * (T & 1)
            for i in range(8):
                A(I(f"buffer_load_ushort v{128 + i}, v{5 if i >= 4 else 4}, s[24:27], s63 offen offset:{(i & 3) * 512 + 64 * T}", "vld", regs_of("v4") + regs_of("v5") + regs_of("s63"), regs_of(f"v{128 + i}"), stage="z"))
            W("s_waitcnt vmcnt(0)")
            for i in range(4): A(V("v_lshl_or_b32", f"v{r+i}", f"v{129 + 2*i}", 16, f"v{128 + 2*i}"))
            A(MFMA(rs("a", 16 * T, 16), rs("v", r, 4), rs("v", PB + 4 * e, 4), rs("a", 16 * T, 16)))
    A(NOP(8)); A(NOP(8))
    A(S("s_add_u32", "s62", "s62", 16384)); W("s_cmp_lt_u32 s62, 0x40000"); W("s_cbranch_scc1 K1_SL2")
    E([V("v_mov_b32", "v15", "v14"), NOP(2), V("v_permlane32_swap_b32", "v14", "v15"), V("v_add_f32", "v14", "v14", "v15"), V("v_rcp_f32", "v25", "v14")])
    A(S("s_lshl_b32", "s70", "s6", 14))
    for fi in range(16):
        dq = 16 + 4 * (fi & 1)
        for j in range(4):
            r = 8 * fi + 2 * j
            E([V("v_accvgpr_read_b32", "v26", f"a{r}"), V("v_accvgpr_read_b32", "v27", f"a{r+1}"), V("v_mul_f32", "v26", "v26", "v25"), V("v_mul_f32", "v27", "v27", "v25"),
               V("v_cvt_pk_bf16_f32", f"v{dq+j}", "v26", "v27")])
        if fi and fi % 4 == 0: A(S("s_add_u32", "s70", "s70", 4096))
        A(BST(4, rs("v", dq, 4), "v24", "s[28:31]", "s70", (fi & 3) * 1024, OPT["st_mods"]))
        W("s_waitcnt vmcnt(0)")
    code, nn = fix_hazards(c)
    return code

def k1():
    c = []
    A = c.append; E = c.extend
    A(RAW("s_cmp_ge_u32 s2, 256")); A(RAW("s_cbranch_scc1 K1_END"))
    if OPT["scr"]:
        E([S("s_and_b32", "s3", "s2", 7), S("s_lshl_b32", "s3", "s3", 3), S("s_bfe_u32", "s4", "s2", hex((3 << 16) | 3)), S("s_or_b32", "s3", "s3", "s4"),
           S("s_andn2_b32", "s4", "s2", 63), S("s_or_b32", "s3", "s3", "s4"), RAW("s_cmp_lt_u32 s2, 256"), S("s_cselect_b32", "s2", "s3", "s2")])
    E(STAMP(0))
    A(RAW("s_load_dwordx16 s[32:47], s[0:1], 0")); A(RAW("s_load_dwordx8 s[48:55], s[0:1], 64"))
    A(V("v_lshrrev_b32", "v26", 6, "v0")); A(V("v_and_b32", "v0", 63, "v0"))
    A(V("v_readfirstlane_b32", "s56", "v26"))
    A(S("s_and_b32", "s7", "s2", 3)); A(S("s_lshr_b32", "s5", "s2", 3))
    A(S("s_and_b32", "s6", "s5", 3)); A(S("s_lshl_b32", "s3", "s7", 2)); A(S("s_add_u32", "s6", "s6", "s3"))
    A(S("s_lshr_b32", "s3", "s6", 1))
    A(S("s_and_b32", "s4", "s2", 4)); A(S("s_lshl_b32", "s4", "s4", 1)); A(S("s_lshr_b32", "s61", "s5", 2)); A(S("s_add_u32", "s4", "s4", "s61"))
    A(S("s_lshl_b32", "s57", "s56", 13)); A(S("s_lshl_b32", "s60", "s56", 12)); A(S("s_mul_i32", "s59", "s56", 7168))
    A(S("s_lshr_b32", "s58", "s56", 1)); A(S("s_lshl_b32", "s58", "s58", 7)); A(S("s_add_u32", "s58", "s58", "s57"))
    A(S("s_mov_b32", "s67", "0xffff0000"))
    A(V("v_lshrrev_b32", "v27", 3, "v0")); A(V("v_and_b32", "v28", 7, "v0"))
    A(V("v_lshrrev_b32", "v29", 4, "v0")); A(V("v_xor_b32", "v30", "v28", "v29"))
    A(V("v_lshlrev_b32", "v30", 4, "v30")); A(V("v_xor_b32", "v31", 64, "v30"))
    A(S("s_mul_i32", "s61", "s56", 32 * 896))
    A(V("v_mul_u32_u24", "v16", 896, "v27")); A(V("v_add_u32", "v16", "s61", "v16"))
    A(V("v_add_u32", "v1", "v16", "v30")); A(V("v_add_u32", "v2", "v16", "v31")); A(V("v_add_u32", "v2", 6144, "v2"))
    A(V("v_add_u32", "v3", 12288, "v1")); A(V("v_add_u32", "v4", 12288, "v2"))
    A(RAW("s_waitcnt lgkmcnt(0)"))
    A(S("s_mul_i32", "s61", "s4", 128 * 896)); E(srd_off(8, 32, "s61", 2048 * 896))
    xd = []
    for g in range(7):
        for q in range(4):
            xd.append(([S("s_add_u32", "m0", "s57", XOFF(g)), S("s_mov_b32", f"s{62 + (g & 1)}", 128 * g)] if q == 0 else []) +
                      [DMA(f"v{1+q}", "s[8:11]", f"s{62 + (g & 1)}", q * 1024, f"x{g}")])
    head = c; c = []; A = c.append; E = c.extend
    A(RAW("s_cmp_ge_u32 s56, 2")); A(S("s_cselect_b32", "s68", "s46", "s44")); A(S("s_cselect_b32", "s69", "s47", "s45"))
    A(S("s_mul_i32", "s61", "s6", 224)); E(srd_off(12, 68, "s61", 448 * 3584))
    A(S("s_lshl_b32", "s61", "s6", 9)); E(srd_off(16, 38, "s61", 448 * 8192))
    A(S("s_lshl_b32", "s61", "s3", 20)); A(S("s_add_u32", "s61", "s61", 1536 * 512))
    E(srd_off(20, 34, "s61", 8 << 20)); E(srd_off(24, 36, "s61", 8 << 20))
    A(S("s_mul_i32", "s61", "s4", 4 * NKAP * 1024)); E(srd_off(28, 54, "s61", 64 * NKAP * 1024))
    A(S("s_lshl_b32", "s70", "s6", 14))
    A(S("s_mul_i32", "s71", "s6", 7168)); A(S("s_add_u32", "s71", "s71", 256 * 1024))
    A(S("s_and_b32", "s61", "s56", 1)); A(S("s_mul_i32", "s61", "s61", 32 * 3584))
    for q in range(7):
        A(V("v_add_u32", "v16", 64 * q, "v0")); A(V("v_mul_u32_u24", "v17", 4682, "v16")); A(V("v_lshrrev_b32", "v17", 16, "v17"))
        A(V("v_mul_u32_u24", "v18", 14, "v17")); A(V("v_sub_u32", "v18", "v16", "v18"))
        A(V("v_mul_u32_u24", "v17", 3584, "v17")); A(V("v_lshl_add_u32", "v17", "v18", 4, "v17"))
        A(V("v_add_u32", "v17", "s61", "v17")); A(V("v_subrev_u32", f"v{248+q}", (q & 3) * 1024, "v17"))
    def dma_stage(n):
        slot = (n % 5) * SLOT
        out = []
        sr = [62, 63, 64, 65]
        def grp(m0s, m0i, soff, srdn, vs, gi):
            s_ = sr[(2 * n + gi) & 3]
            first = [S("s_add_u32", "m0", m0s, m0i), S("s_mov_b32", f"s{s_}", hex(soff))]
            for k, v in enumerate(vs):
                out.append((first if k == 0 else []) + [DMA(f"v{v}", f"s[{srdn}:{srdn+3}]", f"s{s_}", k * 1024, n, OPT["k1d"])])
        if n < 7:
            grp("s58", slot, n * 64 * 3584, 12, [1, 2, 3, 4], 0); grp("s58", slot + 4096, n * 64 * 3584, 12, [5, 6, 7], 1)
        elif n < 15:
            p, hs = (n - 7) >> 1, (n - 7) & 1
            so = hs * 224 * 8192 + p * 128
            grp("s59", slot, so, 16, [1, 2, 3, 4], 0); grp("s59", slot + 4096, so + 32 * 8192, 16, [1, 2, 3], 1)
        elif n < 23:
            t0 = 2 * (n - 15)
            grp("s60", slot, t0 * 16384, 20, [1, 2, 3, 4], 0); grp("s60", slot + 16384, (t0 + 1) * 16384, 20, [1, 2, 3, 4], 1)
        else:
            qd, hs = (n - 23) >> 1, (n - 23) & 1
            so = hs * 256 * 512 + qd * 128
            grp("s57", slot, so, 24, [1, 2, 3, 4], 0); grp("s57", slot + 4096, so + 32 * 512, 24, [1, 2, 3, 4], 1)
        return out
    A(S("s_lshr_b32", "s61", "s5", 2)); A(S("s_lshl_b32", "s61", "s61", 2)); A(S("s_add_u32", "s61", "s61", "s56"))
    A(V("v_mov_b32", "v21", "0x80000000"))
    A(S("s_mul_i32", "s66", "s61", 14)); A(V("v_add_u32", "v16", "s66", "v0")); A(V("v_lshlrev_b32", "v17", 13, "v16"))
    A(V("v_cmp_gt_u32", "vcc", 14, "v0")); A(V("v_cndmask_b32", "v17", "v21", "v17", "vcc")); A(V("v_accvgpr_write_b32", f"a{ST+20}", "v17"))
    A(S("s_and_b32", "s66", "s6", 1)); A(S("s_lshl_b32", "s66", "s66", 5)); A(S("s_add_u32", "s66", "s66", "s61")); A(S("s_lshl_b32", "s66", "s66", 4))
    A(V("v_add_u32", "v16", "s66", "v0")); A(V("v_cmp_gt_u32", "vcc", 16, "v0"))
    A(V("v_lshlrev_b32", "v18", 7, "v16")); A(V("v_cndmask_b32", "v18", "v21", "v18", "vcc")); A(V("v_accvgpr_write_b32", f"a{ST+21}", "v18"))
    A(V("v_lshrrev_b32", "v18", 1, "v16")); A(V("v_lshlrev_b32", "v17", 9, "v18")); A(V("v_and_b32", "v16", 1, "v16")); A(V("v_lshl_add_u32", "v18", "v16", 7, "v17"))
    A(V("v_cndmask_b32", "v18", "v21", "v18", "vcc")); A(V("v_accvgpr_write_b32", f"a{ST+22}", "v18"))
    A(S("s_lshl_b32", "s66", "s2", 2)); A(S("s_add_u32", "s66", "s66", "s56")); A(S("s_lshl_b32", "s66", "s66", 4)); A(V("v_add_u32", "v16", "s66", "v0"))
    A(V("v_lshlrev_b32", "v16", 7, "v16")); A(V("v_cndmask_b32", "v16", "v21", "v16", "vcc")); A(V("v_accvgpr_write_b32", f"a{ST+23}", "v16"))
    A(V("v_add_u32", "v16", hex(1 << 21), "v16")); A(V("v_accvgpr_write_b32", f"a{ST+24}", "v16"))
    E(srd(92, "s40", "s41", 4096 * 896) + srd(96, "s48", "s49", 1792 * 896)); A(S("s_mov_b32", "s66", 131072))
    def touch(kind, k):
        u = V("v_accvgpr_read_b32", "v31", f"a{ST + dict(q=20, k=21, v=22, o=23 + k, d=23)[kind]}")
        sr, so, im = dict(q=(16, 0, 128 * k), k=(20, "s66" if k else 0, 0), v=(24, 0, 256 * k), o=(92, 0, 0), d=(96, 0, 0))[kind]
        return [u, BLD(1, "a200", "v31", f"s[{sr}:{sr+3}]", so, im, "t")]
    def stash(i, v): A(V("v_accvgpr_write_b32", f"a{ST+i}", v))
    A(V("v_lshrrev_b32", "v19", 2, "v0")); A(V("v_and_b32", "v19", 4, "v19")); A(V("v_xor_b32", "v19", "v28", "v19")); A(V("v_lshlrev_b32", "v19", 4, "v19"))
    A(S("s_mul_i32", "s61", "s56", 56 * 8192))
    A(V("v_lshl_add_u32", "v16", "v27", 13, "v19")); A(V("v_add_u32", "v16", "s61", "v16"))
    for q in range(4):
        stash(q, "v16")
        if q < 3: A(V("v_add_u32", "v16", 65536 - 1024, "v16"))
    A(S("s_lshl_b32", "s61", "s56", 7))
    A(V("v_lshlrev_b32", "v16", 9, "v27")); A(V("v_add_u32", "v16", "s61", "v16"))
    A(V("v_add_u32", "v17", "v16", "v30")); stash(4, "v17"); A(V("v_add_u32", "v17", 6144, "v17")); stash(6, "v17")
    A(V("v_add_u32", "v17", "v16", "v31")); A(V("v_add_u32", "v17", 3072, "v17")); stash(5, "v17"); A(V("v_add_u32", "v17", 6144, "v17")); stash(7, "v17")
    A(S("s_lshl_b32", "s61", "s56", 15))
    A(V("v_lshl_add_u32", "v16", "v27", 9, "v19")); A(V("v_add_u32", "v16", "s61", "v16"))
    for q in range(4):
        stash(8 + q, "v16")
        if q < 3: A(V("v_add_u32", "v16", 3072, "v16"))
    A(V("v_lshrrev_b32", "v20", 5, "v0")); A(V("v_bfe_u32", "v21", "v0", 4, 1)); A(V("v_bfe_u32", "v22", "v0", 2, 2)); A(V("v_and_b32", "v23", 3, "v0"))
    A(V("v_lshlrev_b32", "v16", 7, "v22")); A(V("v_lshrrev_b32", "v17", 1, "v22")); A(V("v_lshl_add_u32", "v16", "v17", 6, "v16")); A(V("v_lshl_add_u32", "v16", "v21", 5, "v16"))
    A(V("v_lshl_add_u32", "v17", "v20", 9, "v16")); A(V("v_lshl_add_u32", "v17", "v23", 3, "v17")); stash(18, "v17")
    A(V("v_xor_b32", "v17", 64, "v17")); stash(19, "v17")
    A(V("v_and_b32", "v18", 1, "v23")); A(V("v_lshlrev_b32", "v18", 1, "v18")); A(V("v_lshrrev_b32", "v17", 1, "v23")); A(V("v_or_b32", "v18", "v18", "v17"))
    A(V("v_lshl_add_u32", "v17", "v20", 10, "v16")); A(V("v_lshl_add_u32", "v17", "v18", 3, "v17")); stash(12, "v17")
    A(V("v_xor_b32", "v17", 64, "v17")); stash(13, "v17")
    A(V("v_lshl_add_u32", "v17", "v20", 3, "v22")); A(V("v_mul_u32_u24", "v17", 224, "v17")); A(V("v_lshl_add_u32", "v17", "v23", 3, "v17"))
    A(V("v_mul_u32_u24", "v18", 16512, "v21")); A(V("v_add_u32", "v25", "v17", "v18"))
    A(V("v_bfe_u32", "v16", "v0", 3, 2)); A(V("v_lshlrev_b32", "v16", 10, "v16")); A(V("v_lshl_add_u32", "v16", "v28", 7, "v16"))
    A(V("v_bfe_u32", "v17", "v0", 1, 3)); A(V("v_xor_b32", "v17", "v17", "v20")); A(V("v_lshl_add_u32", "v16", "v17", 4, "v16"))
    A(S("s_add_u32", "s61", "s57", SLOT))
    for sp in range(4):
        A(V("v_xor_b32", "v17", 32 * sp, "v16")); stash(14 + sp, "v17"); A(V("v_add_u32", f"v{8+sp}", "s61", "v17"))
    A(S("s_mul_i32", "s61", "s56", NKAP * 1024)); A(V("v_lshlrev_b32", "v24", 4, "v0")); A(V("v_add_u32", "v24", "s61", "v24"))
    A(V("v_mov_b32", "v26", "0x3f803f80"))
    for r in (12, 13, 14, 15): A(V("v_mov_b32", f"v{r}", 0))
    setup = c; c = head; A = c.append; E = c.extend
    per = -(-len(setup) // (len(xd) - 4))
    sp_ = 0
    for k, x in enumerate(xd):
        E(x)
        if k >= 3:
            e_ = min(sp_ + per, len(setup))
            while e_ < len(setup) and setup[e_].t.split()[0] in ("s_addc_u32", "s_cselect_b32"): e_ += 1
            E(setup[sp_:e_]); sp_ = e_
    E(setup[sp_:])
    for q in range(7): A(V("v_mov_b32", f"v{1+q}", f"v{248+q}"))
    def gtouch():
        A(S("s_lshl_b32", "s61", "s2", 2)); A(S("s_add_u32", "s61", "s61", "s56"))
        A(RAW("s_cmp_ge_u32 s61, 512")); A(S("s_cselect_b32", "s8", "s46", "s44")); A(S("s_cselect_b32", "s9", "s47", "s45")); A(S("s_mov_b32", "s10", 448 * 3584))
        A(S("s_and_b32", "s62", "s61", 511)); A(S("s_mul_i32", "s62", "s62", 14 * 128)); A(S("s_add_u32", "s62", "s62", 192 * 3584))
        A(V("v_lshlrev_b32", "v16", 7, "v0")); A(V("v_mov_b32", "v17", "0x80000000"))
        A(V("v_cmp_gt_u32", "vcc", 14, "v0")); A(V("v_cndmask_b32", "v18", "v17", "v16", "vcc"))
        if OPT["gt"] & 1: A(BLD(1, "a200", "v18", "s[8:11]", "s62", 0, "t"))
        A(V("v_cmp_gt_u32", "vcc", 28, "v0")); A(V("v_cndmask_b32", "v18", "v17", "v16", "vcc"))
        A(S("s_mov_b32", "s8", "s38")); A(S("s_mov_b32", "s9", "s39")); A(S("s_mov_b32", "s10", 448 * 8192)); A(S("s_mul_i32", "s62", "s61", 28 * 128))
        if OPT["gt"] & 2: A(BLD(1, "a200", "v18", "s[8:11]", "s62", 0, "t"))
    if OPT["gt"] & 4: gtouch()
    for x in dma_stage(0): E(x)
    if not OPT["gt"] & 12: gtouch()
    E(STAMP(1))
    xa = [AReg(8 + i) for i in range(4)]
    def xread(g):
        A(WAITV([f"x{g}"]))
        for sp in range(4):
            pre, off = xa[sp].at(XOFF(g) - SLOT); E(pre)
            A(DSR("ds_read_b128", rs("v", X0 + 16 * g + 4 * sp, 4), f"v{8+sp}", off, tag=("x", g, sp)))
    def stats(g):
        A(WAITL([("x", g, 3)]))
        for i in range(16):
            r = X0 + 16 * g + i
            A(V("v_dot2_f32_bf16", f"v{12 + (i & 1)}", f"v{r}", "v26", f"v{12 + (i & 1)}"))
            A(V("v_dot2_f32_bf16", f"v{14 + (i & 1)}", f"v{r}", f"v{r}", f"v{14 + (i & 1)}"))
    xread(0); E(STAMP(2))
    for g in range(1, 7):
        xread(g); stats(g - 1)
        if g == 2:
            for x in dma_stage(1): E(x)
            if OPT["gt"] & 8: gtouch()
        if g == OPT["s2at"]:
            for x in dma_stage(2): E(x)
    E(STAMP(3))
    stats(6)
    A(V("v_mov_b32", "v8", "v25"))
    A(V("v_add_f32", "v12", "v12", "v13")); A(V("v_add_f32", "v14", "v14", "v15"))
    A(V("v_mov_b32", "v13", "v12")); A(V("v_mov_b32", "v15", "v14"))
    A(V("v_permlane32_swap_b32", "v12", "v13")); A(V("v_permlane32_swap_b32", "v14", "v15"))
    A(V("v_add_f32", "v12", "v12", "v13")); A(V("v_add_f32", "v14", "v14", "v15"))
    A(V("v_mul_f32", "v13", hex(f2u(1 / 448.)), "v12"))
    A(V("v_mul_f32", "v14", hex(f2u(1 / 448.)), "v14"))
    A(V("v_fma_f32", "v14", "-v13", "v13", "v14")); A(V("v_max_f32", "v14", 0, "v14"))
    A(V("v_add_f32", "v14", hex(f2u(1e-5)), "v14")); A(V("v_rsq_f32", "v12", "v14"))
    A(V("v_mul_f32", "v12", hex(f2u(CSC)), "v12"))
    A(V("v_mul_f32", "v13", "v13", "v12")); A(V("v_sub_f32", "v13", 0, "v13"))
    A(V("v_mov_b32", "v14", 0)); A(V("v_mov_b32", "v15", 0))
    E([S("s_add_u32", "s8", "s54", hex(FLAGO)), S("s_addc_u32", "s9", "s55", 0), S("s_mov_b32", "s10", 65536), S("s_lshl_b32", "s61", "s2", 8), V("v_lshlrev_b32", "v16", 2, "v0"),
       WAITV([0]), BST(1, "v14", "v16", "s[8:11]", "s61", 0), BAR()])
    pro = c

    mf = []; reads = []
    D = OPT["D"]
    head = {}; tail_ = {}; bar = {}
    state = dict(stage=0)
    def ring(i): return RING + 4 * (i % 8)
    def H(g, ins): head.setdefault(max(g, -1), []).extend(ins)
    def add(stage, rd_fn, d, b, cc, pre=None):
        i = len(mf)
        if pre: H(i - D, pre)
        if stage != state["stage"]:
            H(i - D, [WAITV([stage]), BAR()]); bar[stage] = i - D; state["stage"] = stage
        ins = rd_fn(ring(i), i)
        H(i - D, ins)
        mf.append(MFMA(d, rs("a", ring(i), 4), b, cc, need=[x.tag for x in ins if x.k == "dsr"]))
    def tr2(ar, a0, a1):
        def f(rg, i):
            p0, o0 = ar.at(a0); p1, o1 = ar.at(a1); assert not p1
            return p0 + [DSR("ds_read_b64_tr_b16", rs("a", rg, 2), f"v{ar.v}", o0, tag=(i, 0)), DSR("ds_read_b64_tr_b16", rs("a", rg + 2, 2), f"v{ar.v}", o1, tag=(i, 1))]
        return f
    def unst(dst, i): return V("v_accvgpr_read_b32", f"v{dst}", f"a{ST+i}")
    ga = AReg(8)
    for s in range(28):
        n, ks = s >> 2, s & 3
        for tt in range(7):
            a0 = (n % 5) * SLOT + (ks >> 1) * 8192 + 16 * (ks & 1) * 224 + 32 * tt
            d = rs("a", 16 * tt, 16)
            add(n, tr2(ga, a0, a0 + 4 * 224), d, rs("v", X0 + 4 * s, 4), "0" if s == 0 else d)
    iWQ = len(mf)
    wa = [AReg(8), AReg(9)]
    for p in range(4):
        for s in range(28):
            n, ks = 7 + 2 * p + s // 14, s % 14
            for th in range(2):
                a0 = (n % 5) * SLOT + ks * 2048
                d = rs("v", (R1 if p & 1 else R0) + 16 * th, 16)
                add(n, tr2(wa[th], a0, a0 + 512), d, rs("v", X0 + 4 * s, 4), "0" if s == 0 else d,
                    pre=[unst(8, 12), unst(9, 13)] if (p, s, th) == (0, 0, 0) else None)
    iS = len(mf)
    ka = [AReg(8 + i) for i in range(4)]
    for j in range(16):
        n = 15 + (j >> 1)
        for ks in range(16):
            a0 = (n % 5) * SLOT + (j & 1) * 16384 + (ks >> 2) * 4096
            def f(rg, i, a0=a0, ks=ks):
                p0, o0 = ka[ks & 3].at(a0)
                return p0 + [DSR("ds_read_b128", rs("a", rg, 4), f"v{8 + (ks & 3)}", o0, tag=(i, 0))]
            d = rs("v", sbuf(j), 16)
            add(n, f, d, rs("v", QF(ks), 4), d if ks else ("0" if j < 2 else rs("v", CIN, 16)),
                pre=[unst(8 + i, 14 + i) for i in range(4)] if (j, ks) == (0, 0) else None)
    iPV = len(mf)
    va = [AReg(8), AReg(9)]
    def oacc(T): return (("a", 32 * ((T >> 1) & 1) + 16 * (T & 1)) if T < 6 else ("v", CIN if T == 6 else SA[1]))
    olast = {}; ofirst = {}
    for qd in range(4):
        order = [(kap, th) for kap in range(32) for th in range(2)] if qd < 3 else [(kap, th) for th in range(2) for kap in range(32)]
        for kap, th in order:
            n = 23 + 2 * qd + (kap >> 4)
            a0 = (n % 5) * SLOT + (kap & 15) * 2048
            k_, b_ = oacc(2 * qd + th); d = rs(k_, b_, 16)
            ofirst.setdefault(2 * qd + th, len(mf)); olast[2 * qd + th] = len(mf)
            add(max(n, state["stage"]), tr2(va[th], a0, a0 + 1024), d, rs("v", PF(kap), 4), d if kap else "0",
                pre=[unst(8, 18), unst(9, 19)] if (qd, kap, th) == (0, 0, 0) else None)
    W = OPT["W"]
    for i in range(0, len(mf), W): tail_.setdefault(i - 1, []).append(WAITL(mf[min(i + W, len(mf)) - 1].need))
    dstream = []
    bar[0] = -1; bar[31] = len(mf); gp = -1
    for n in range(3, 31):
        g0 = bar[n - 3] + 1 if n >= 5 else (n - 3) * 14
        g1 = bar[n - 2] if n >= 5 else g0 + 14
        if n in (7, 15, 23):
            base = {7: 0, 15: 4, 23: 8}[n]
            for q in range(4): dstream.append(Item(unst(1 + q, base + q), after=g0 - 1, before=g0 + 2))
            g0 += 1
        grp = dma_stage(n)
        for k, ins in enumerate(grp):
            g = max(g0 + 1 + (k * (g1 - g0 - 2)) // len(grp), gp + 1)
            while g in tail_ or any(x.k == "bar" for x in head.get(g, [])): g += 1
            for x in ins[:-1]: dstream.append(Item(x, after=g - 3, before=g))
            ins[-1].cost = OPT["dc"]; gp = g
            dstream.append(Item(ins[-1], after=g, before=g + 1))
    vs = []; es = []
    def P(ins, after=-1, before=10**9):
        for x in ins: vs.append(Item(x, after=after, before=before))
    for s in range(28):
        for j in range(4):
            r = X0 + 4 * s + j; t0, t1 = (16, 17) if j & 1 else (18, 19)
            P([V("v_lshlrev_b32", f"v{t0}", 16, f"v{r}"), V("v_and_b32", f"v{t1}", "s67", f"v{r}"),
               V("v_fma_f32", f"v{t0}", f"v{t0}", "v12", "v13"), V("v_fma_f32", f"v{t1}", f"v{t1}", "v12", "v13"),
               V("v_cvt_pk_bf16_f32", f"v{r}", f"v{t0}", f"v{t1}")], before=7 * s)
    def qconv(p):
        rb = R1 if p & 1 else R0
        aft = iWQ + 56 * (p + 1) + 1
        for f in range(4):
            ks = 4 * p + f
            bef = (iWQ + 56 * (p + 2)) if p < 2 else (iS if p == 2 else iS + ks)
            P([V("v_cvt_pk_bf16_f32", f"v{QF(ks)+j}", f"v{rb + 8*f + 2*j}", f"v{rb + 8*f + 2*j + 1}") for j in range(4)], after=aft, before=min(bef, iS + ks))
    def guepi(tt):
        dq = 16 + 4 * (tt & 1)
        for j in range(4):
            P([V("v_accvgpr_read_b32", "v26", f"a{16*tt + 2*j}"), V("v_accvgpr_read_b32", "v27", f"a{16*tt + 8 + 2*j}"),
               V("v_accvgpr_read_b32", "v28", f"a{16*tt + 2*j + 1}"), V("v_accvgpr_read_b32", "v29", f"a{16*tt + 8 + 2*j + 1}"),
               V("v_mul_f32", "v26", "v26", "v27"), V("v_mul_f32", "v28", "v28", "v29"),
               V("v_cvt_pk_bf16_f32", f"v{dq+j}", "v26", "v28")], after=iWQ + 1, before=iPV)
        if tt == 4: P([S("s_add_u32", "s71", "s71", 4096)])
        P([BST(4, rs("v", dq, 4), "v24", "s[28:31]", "s71", (tt & 3) * 1024, OPT["st_mods"])])
    ts = []
    for spec in OPT["tp"].split(","):
        if spec:
            for x in touch(spec[0], int(spec[1])): ts.append(Item(x, after=int(spec[3:]), before=int(spec[3:]) + 8))
    for tt in range(3): guepi(tt)
    qconv(0)
    for tt in range(3, 7): guepi(tt)
    qconv(1); qconv(2); qconv(3)
    for j in range(16):
        b = sbuf(j); aft = iS + 16 * j + 15 + 2
        nxt = [k for k in range(j + 1, 16) if sbuf(k) == b]
        bef = iS + 16 * nxt[0] if nxt else iPV + 4 * j
        if j == 15: bef = iPV + 4 * j
        if j == 0:
            ins = [V("v_max3_f32", "v30", f"v{b}", f"v{b+1}", f"v{b+2}")]
            for i in range(3, 15, 2): ins.append(V("v_max3_f32", "v30", "v30", f"v{b+i}", f"v{b+i+1}"))
            ins += [V("v_max_f32", "v30", "v30", f"v{b+15}"), V("v_mov_b32", "v31", "v30"), NOP(2), V("v_permlane32_swap_b32", "v30", "v31"), V("v_max_f32", "v30", "v30", "v31")]
            P(ins, after=aft, before=iS + 32); mx = vs[-1]
            P([V("v_sub_f32", f"v{CIN+i}", 0, "v30") for i in range(16)], after=aft, before=iS + 32)
        for i in range(0, 16, 2):
            ex = []
            for r in (b + i, b + i + 1):
                if j < 2: es.append(Item(V("v_sub_f32", f"v{r}", f"v{r}", "v30"), after=aft, before=bef - 1, dep=mx))
                ex.append(Item(V("v_exp_f32", f"v{r}", f"v{r}"), after=aft, before=bef - 1)); es.append(ex[-1])
            vs.append(Item(V("v_add_f32", "v14", "v14", f"v{b+i}"), before=bef, dep=ex[0], lag=1))
            vs.append(Item(V("v_add_f32", "v15", "v15", f"v{b+i+1}"), before=bef, dep=ex[1], lag=1))
            vs.append(Item(V("v_cvt_pk_bf16_f32", f"v{PF(2*j) + (i >> 1)}", f"v{b+i}", f"v{b+i+1}"), before=bef, dep=ex[1], lag=1))
    P([V("v_add_f32", "v14", "v14", "v15"), V("v_mov_b32", "v15", "v14"), NOP(2), V("v_permlane32_swap_b32", "v14", "v15"),
       V("v_add_f32", "v14", "v14", "v15"), V("v_rcp_f32", "v25", "v14"), V("v_cmp_ngt_f32", "vcc", hex(f2u(2.0 ** OPT["thr"])), "v14")])
    for T in range(8):
        k_, b_ = oacc(T); aft = min(olast[T] + 2, len(mf) - 1)
        bef = ofirst[T + 4] if T + 4 < 6 else 10**9
        for e in range(2):
            dq = 16 + 4 * e
            for j in range(4):
                r = b_ + 8 * e + 2 * j; t0, t1 = (26, 27) if j & 1 else (28, 29)
                if k_ == "a":
                    ins = [V("v_accvgpr_read_b32", f"v{t0}", f"a{r}"), V("v_accvgpr_read_b32", f"v{t1}", f"a{r+1}"),
                           V("v_mul_f32", f"v{t0}", f"v{t0}", "v25"), V("v_mul_f32", f"v{t1}", f"v{t1}", "v25")]
                else:
                    ins = [V("v_mul_f32", f"v{t0}", f"v{r}", "v25"), V("v_mul_f32", f"v{t1}", f"v{r+1}", "v25")]
                P(ins + [V("v_cvt_pk_bf16_f32", f"v{dq+j}", f"v{t0}", f"v{t1}")], after=aft, before=bef)
            fi = 2 * T + e
            if fi and fi % 4 == 0: P([S("s_add_u32", "s70", "s70", 4096)])
            P([BST(4, rs("v", dq, 4), "v24", "s[28:31]", "s70", (fi & 3) * 1024, OPT["st_mods"])])
    ss = [Item(STAMP(4 + k), after=ix, before=ix + 1) for k, ix in enumerate([0, iWQ, iS, iPV, len(mf) - 2])] if OPT["stamp"] else []
    main, hist = schedule2(mf, head, tail_, [dstream, ts, ss, es, vs], cap=OPT["budget"])
    code = resolve_waits(pro + main)
    code, nn = fix_hazards(code)
    code += [RAW("s_cbranch_vccz K1_FIN")] + k1_slow() + [LABEL("K1_FIN")] + fix_hazards(STAMP_OUT(9, 0))[0]
    check_scc(code)
    code.append(LABEL("K1_END"))
    print(f"K1: {len(code)} instrs, {len(mf)} mfma, {nn} nops inserted", file=sys.stderr)
    return code

FLAGO = 24 << 20
PARTO = 25 << 20
def lf_order(N):
    if not OPT["lf"]: return [list(range(N))] * 4
    if OPT["lf"] == 1:
        order = [[g] for g in range(4)]; fat = {g: 0 for g in range(4)}; nx = 4; lead = lambda t, g: t % 4 == g
    else:
        order = [[g >> 1] for g in range(4)]; fat = {0: 0, 1: 0}; nx = 2
        lead = lambda t, g: (g & 1) == (t + 1) & 1 if t <= OPT["lf"] else t % 4 == g
    for t in range(1, N):
        for g in range(4):
            p = [c_ for c_ in sorted(fat) if c_ not in order[g] and fat[c_] < t]
            if (lead(t, g) or not p) and nx < N: order[g].append(nx); fat[nx] = t; nx += 1
            else: order[g].append(p[0])
    assert all(sorted(o) == list(range(N)) for o in order)
    return order
def k2():
    c = []; A = c.append; E = c.extend
    LA = OPT["LA"]; NS = LA + 2; LB = OPT["LB"]; RD = OPT["RD"]; AK = OPT["AK"]; XO = OPT["xo"]
    A(RAW("s_cmp_ge_u32 s2, 224")); A(RAW("s_cbranch_scc1 K2_END"))
    E(STAMP(0))
    A(RAW("s_load_dwordx16 s[32:47], s[0:1], 0")); A(RAW("s_load_dwordx8 s[48:55], s[0:1], 64"))
    A(V("v_lshrrev_b32", "v26", 6, "v0")); A(V("v_and_b32", "v0", 63, "v0"))
    A(V("v_readfirstlane_b32", "s56", "v26"))
    A(S("s_and_b32", "s3", "s2", 3)); A(S("s_lshr_b32", "s4", "s2", 3))
    A(S("s_mul_i32", "s5", "s4", 9363)); A(S("s_lshr_b32", "s5", "s5", 16))
    A(S("s_mul_i32", "s6", "s5", 7)); A(S("s_sub_u32", "s6", "s4", "s6"))
    A(S("s_sub_u32", "s7", "s5", "s6")); A(S("s_and_b32", "s7", "s7", 3)); A(S("s_lshl_b32", "s58", "s7", 3))
    A(S("s_lshl_b32", "s3", "s3", 2)); A(S("s_add_u32", "s5", "s5", "s3"))
    A(S("s_lshl_b32", "s57", "s56", 12))
    A(V("v_lshrrev_b32", "v27", 3, "v0")); A(V("v_and_b32", "v28", 7, "v0"))
    A(V("v_lshrrev_b32", "v19", 2, "v0")); A(V("v_and_b32", "v19", 4, "v19")); A(V("v_xor_b32", "v19", "v28", "v19")); A(V("v_lshlrev_b32", "v19", 4, "v19"))
    A(S("s_mul_i32", "s61", "s56", 32 * 896))
    A(V("v_mul_u32_u24", "v1", 896, "v27")); A(V("v_add3_u32", "v1", "v1", "v19", "s61"))
    for q in range(1, 4): A(V("v_add_u32", f"v{1+q}", 6144, f"v{q}"))
    A(V("v_lshlrev_b32", "v5", 4, "v0")); A(V("v_add_u32", "v6", 4096, "v5"))
    A(S("s_lshl_b32", "s60", "s5", 2)); A(S("s_add_u32", "s60", "s60", "s56"))
    A(RAW("s_waitcnt lgkmcnt(0)"))
    A(S("s_lshl_b32", "s61", "s6", 7)); E(srd_off(8, 48, "s61", 1792 * 896)); E(srd_off(12, 40, "s61", 4096 * 896))
    A(S("s_mul_i32", "s61", "s60", NKAP * 1024)); E(srd_off(16, 54, "s61", 64 * NKAP * 1024))
    A(RAW("s_bitcmp1_b32 s2, 2")); A(RAW("s_cbranch_scc0 K2_PROD"))
    head = fix_hazards(c)[0]
    BR = 64; AF = 32; XR = 224; G = 192; CA = 128 * 896; CB = 8192
    def body(cons):
        c = []; A = c.append; E = c.extend
        NF = 14 if cons else 0; N = NF + XO if cons else 32 - XO
        o0 = 0 if cons else XO
        order = lf_order(N)
        mixed = [t for t in range(N) if len({o[t] < NF for o in order}) > 1]
        lastF = max([t for t in range(N) if any(o[t] < NF for o in order)], default=-1)
        aS, bS, bF = ((o0 - NF) * CA) & 0xffffffff, ((o0 - NF) * CB) & 0xffffffff, 256 * 1024
        def issueA(t):
            if t >= N: return
            isF = order[0][t] < NF
            sb = 92 + 2 * (t & 3)
            sr = "s[68:71]" if t in mixed else ("s[8:11]" if isF else "s[12:15]")
            A(S("s_lshr_b32", "s61", hex(sum(order[g][t] << (8 * g) for g in range(4))), "s58")); A(S("s_and_b32", "s61", "s61", 255))
            A(S("s_mul_i32", f"s{sb}", "s61", CA)); A(S("s_lshl_b32", f"s{sb+1}", "s61", 13))
            if t in mixed:
                A(RAW(f"s_cmp_lt_u32 s61, {NF}"))
                for k in range(3): A(S("s_cselect_b32", f"s{68+k}", f"s{8+k}", f"s{12+k}"))
                A(S("s_cselect_b32", "s59", 0, hex(aS))); A(S("s_mov_b32", "s61", hex(bS))); A(S("s_cselect_b32", "s61", hex(bF), "s61")); A(S("s_mov_b32", "s71", "0x20000"))
                A(S("s_add_u32", f"s{sb}", f"s{sb}", "s59")); A(S("s_add_u32", f"s{sb+1}", f"s{sb+1}", "s61"))
            else:
                if not isF: A(S("s_add_u32", f"s{sb}", f"s{sb}", hex(aS)))
                A(S("s_add_u32", f"s{sb+1}", f"s{sb+1}", hex(bF if isF else bS)))
            A(S("s_add_u32", "m0", "s57", (t % NS) * 16384))
            for q in range(4): A(DMA(f"v{1+q}", sr, f"s{sb}", q * 1024, ("a", t), OPT["k2a"]))
        def breg(t, k): return BR + ((t & 1) * 8 + k) * 4
        def tab(t): return hex(sum(order[g][t] << (8 * g) for g in range(4)))
        def issueB(u):
            t, k = u >> 3, u & 7
            if t < N: A(BLD(4, rs("v", breg(t, k), 4), f"v{5 + (k >> 2)}", "s[16:19]", f"s{93 + 2 * (t & 3)}", (k & 3) * 1024, ("b", t, k), OPT["k2b"]))
        for t in range(LA):
            issueA(t)
            for u in range(8 * t, min(8 * t + 8, LB)): issueB(u)
            if t == 0:
                A(V("v_lshrrev_b32", "v20", 5, "v0")); A(V("v_bfe_u32", "v21", "v0", 4, 1)); A(V("v_bfe_u32", "v22", "v0", 2, 2)); A(V("v_and_b32", "v23", 3, "v0"))
                A(V("v_lshlrev_b32", "v16", 7, "v22")); A(V("v_lshrrev_b32", "v17", 1, "v22")); A(V("v_lshl_add_u32", "v16", "v17", 6, "v16"))
                A(V("v_lshl_add_u32", "v16", "v20", 9, "v16")); A(V("v_and_b32", "v17", 1, "v23")); A(V("v_lshl_add_u32", "v16", "v17", 5, "v16"))
                A(V("v_lshl_add_u32", "v16", "v21", 4, "v16")); A(V("v_lshrrev_b32", "v17", 1, "v23")); A(V("v_lshl_add_u32", "v8", "v17", 3, "v16"))
                A(V("v_xor_b32", "v9", 64, "v8"))
                A(S("s_add_u32", "s20", "s54", hex(FLAGO))); A(S("s_addc_u32", "s21", "s55", 0)); A(S("s_mov_b32", "s22", 8 << 20)); A(S("s_mov_b32", "s23", "0x20000"))
                A(S("s_mul_i32", "s61", "s5", 7)); A(S("s_add_u32", "s61", "s61", "s6")); A(S("s_lshl_b32", "s66", "s61", 8))
                A(S("s_lshl_b32", "s67", "s61", 15)); A(S("s_lshl_b32", "s61", "s56", 13)); A(S("s_add_u32", "s67", "s67", "s61")); A(S("s_add_u32", "s67", "s67", hex(PARTO - FLAGO)))
                A(V("v_mov_b32", "v10", 0))
                if cons:
                    for i in range(32): A(V("v_accvgpr_write_b32", f"a{32+i}", 0))
                    E(srd(24, "s50", "s51", hex(2048 * 896))); E(srd(28, "s32", "s33", hex(2048 * 896)))
                    A(S("s_mul_i32", "s61", "s60", 32 * 896)); A(S("s_lshl_b32", "s59", "s6", 7)); A(S("s_add_u32", "s61", "s61", "s59"))
                    A(V("v_mul_u32_u24", "v16", 896, "v27")); A(V("v_lshl_add_u32", "v16", "v28", 4, "v16")); A(V("v_add_u32", "v7", "s61", "v16"))
                    for q in range(1, 4): A(S("s_mov_b32", f"s{61+q}", 7168 * q))
                    A(S("s_lshl_b32", "s61", "s56", 13)); A(S("s_add_u32", "s61", "s61", NS * 16384))
                    A(V("v_and_b32", "v16", 31, "v0")); A(V("v_lshlrev_b32", "v17", 2, "v20")); A(V("v_xor_b32", "v17", "v17", "v28")); A(V("v_lshlrev_b32", "v17", 4, "v17"))
                    A(V("v_lshl_add_u32", "v16", "v16", 8, "v17")); A(V("v_add_u32", "v12", "s61", "v16"))
                    for j in range(1, 4): A(V("v_xor_b32", f"v{12+j}", 16 * j, "v12"))
                    A(V("v_lshlrev_b32", "v17", 1, "v28")); A(V("v_xor_b32", "v17", "v17", "v27")); A(V("v_lshlrev_b32", "v17", 4, "v17"))
                    A(V("v_lshl_add_u32", "v16", "v27", 8, "v17")); A(V("v_add_u32", "v24", "s61", "v16")); A(V("v_xor_b32", "v25", 16, "v24"))
        la = [AReg(8), AReg(9)]
        def rd(u):
            t, k = u >> 3, u & 7
            if t >= N: return
            if k == 0: A(WAITV([("a", t)])); A(BAR())
            for cb in range(2):
                r = AF + (u & 3) * 8 + 4 * cb
                pre, o = la[cb].at((t % NS) * 16384 + k * 2048); E(pre)
                A(DSR("ds_read_b64_tr_b16", rs("v", r, 2), f"v{8+cb}", o, tag=(u, cb, 0))); A(DSR("ds_read_b64_tr_b16", rs("v", r + 2, 2), f"v{8+cb}", o + 1024, tag=(u, cb, 1)))
        PR = 128; P2 = 160; assert LB <= 8 * LA - AK + 0 or True
        assert all(any(o[t] < NF for o in order) for t in range(lastF + 1))
        def pload():
            for q in range(8): A(BLD(4, rs("v", PR + 4 * q, 4), f"v{5 + (q >> 2)}", "s[20:23]", "s67", (q & 3) * 1024, ("p", q), " sc1"))
        E(STAMP(1))
        for u in range(RD): rd(u)
        for t in range(N):
            if t in (10, 15, 20): E(STAMP({10: 2, 15: 3, 20: 4}[t]))
            if t in mixed: A(I(f"@B {t}", "label", cost=0))
            ab = 0 if t <= lastF else 32
            for k in range(8):
                u = 8 * t + k
                if k == AK: issueA(t + LA)
                if cons and u == OPT["xat"]:
                    for q in range(4): A(BLD(4, rs("v", XR + 4 * q, 4), "v7", "s[28:31]", f"s{61+q}" if q else 0, 0, "x"))
                if cons and u == 8 * N - OPT["fa"]: A(BLD(1, "v11", "v10", "s[20:23]", "s66", 0, "fl", " sc1"))
                if cons and u == 8 * N - OPT["fb"]:
                    E(STAMP(5))
                    A(WAITV(["fl"])); A(V("v_readfirstlane_b32", "s59", "v11")); A(S("s_mov_b32", "s61", 1 << 16)); A(NOP(4))
                    A(RAW("s_cmp_lg_u32 s59, 0")); A(RAW("s_cbranch_scc1 K2_GOT"))
                    A(LABEL("K2_POLL"))
                    A(RAW("buffer_load_dword v11, v10, s[20:23], s66 offen sc1")); A(RAW("s_waitcnt vmcnt(0)")); A(V("v_readfirstlane_b32", "s59", "v11"))
                    A(S("s_sub_u32", "s61", "s61", 1)); A(NOP(4)); A(RAW("s_cmp_lg_u32 s59, 0")); A(S("s_cselect_b32", "s61", 0, "s61"))
                    A(RAW("s_cmp_lg_u32 s61, 0")); A(RAW("s_cbranch_scc1 K2_POLL"))
                    A(LABEL("K2_GOT")); E(STAMP(6))
                    pload()
                A(WAITV([("b", t, k)]))
                for cb in range(2):
                    d = rs("a", ab + 16 * cb, 16)
                    A(MFMA(d, rs("v", AF + (u & 3) * 8 + 4 * cb, 4), rs("v", breg(t, k), 4), "0" if u == 0 else d, need=[(u, cb, 0), (u, cb, 1)]))
                    if cb == 0: rd(u + RD)
                issueB(u + LB)
                e = u - 8 * (lastF + 1) - 2
                if cons and 0 <= e < 33 and OPT["silu"]:
                    if e: A(V("v_add_f32", "v16", 1.0, "v16")); A(V("v_rcp_f32", "v17", "v16"))
                    if e < 32:
                        r = f"v{G+e}"
                        A(V("v_accvgpr_read_b32", r, f"a{e}")); A(V("v_mul_f32", r, hex(f2u(1.0 / (CSC * CSC))), r)); A(V("v_mul_f32", "v16", hex(f2u(-LOG2E)), r))
                    if e: A(V("v_mul_f32", f"v{G+e-1}", f"v{G+e-1}", "v17"))
                    if e < 32: A(V("v_exp_f32", "v16", "v16"))
            if t in mixed: A(I("@E", "label", cost=0))
        if not cons:
            E(STAMP(5))
            for q in range(8): A(BST(4, rs("a", 32 + 4 * q, 4), f"v{5 + (q >> 2)}", "s[20:23]", "s67", (q & 3) * 1024, " sc1"))
            A(V("v_mov_b32", "v11", 1))
            A(RAW("s_waitcnt vmcnt(0)")); A(BAR()); E(STAMP(6))
            A(RAW("s_cmp_eq_u32 s56, 0")); A(RAW("s_cbranch_scc0 K2_FIN"))
            A(BST(1, "v11", "v10", "s[20:23]", "s66", 0, " sc1"))
        else:
            for q in range(8):
                for i in range(4 * q, 4 * q + 4): A(V("v_accvgpr_read_b32", f"v{P2+i}", f"a{32+i}"))
                A(WAITV([("p", q)]))
                for i in range(4 * q, 4 * q + 4): A(V("v_add_f32", f"v{PR+i}", f"v{PR+i}", f"v{P2+i}"))
                for i in range(4 * q, 4 * q + 4): A(V("v_mul_f32", f"v{PR+i}", f"v{PR+i}", f"v{G+i}"))
                A(DSW("ds_write_b128", f"v{12 + (q & 3)}", rs("v", PR + 4 * q, 4), 128 * (q >> 2), tag=("y", q)))
            for q in range(4):
                for h_ in range(2): A(DSR("ds_read_b128", rs("v", P2 + 8 * q + 4 * h_, 4), f"v{24+h_}", 2048 * q, tag=("z", q, h_)))
            for q in range(4):
                for j in range(4):
                    A(V("v_lshlrev_b32", f"v{PR+2*j}", 16, f"v{XR+4*q+j}")); A(V("v_and_b32", f"v{PR+2*j+1}", "0xffff0000", f"v{XR+4*q+j}"))
                A(WAITL([("z", q, 1)]))
                for i in range(8): A(V("v_add_f32", f"v{PR+i}", f"v{PR+i}", f"v{P2+8*q+i}"))
                for j in range(4): A(V("v_cvt_pk_bf16_f32", f"v{XR+4*q+j}", f"v{PR+2*j}", f"v{PR+2*j+1}"))
                A(BST(4, rs("v", XR + 4 * q, 4), "v7", "s[24:27]", f"s{61+q}" if q else 0, 0, OPT["ost"]))
            A(RAW("s_branch K2_FIN"))
        code = resolve_waits(c, look=1)
        code, nn = fix_hazards(code)
        out = []; blk = None
        for x in code:
            if x.t.startswith("@B"): blk = []; t = int(x.t.split()[1]); continue
            if x.t == "@E":
                sv = []
                for y in blk:
                    if y.k == "mfma":
                        d, a_, b_, c_ = y.t.split(" ", 1)[1].split(", ")
                        d2 = rs("a", y.wr[0][1] + 32, 16)
                        sv.append(MFMA(d2, a_, b_, d2))
                    else: sv.append(y)
                out += [S("s_lshr_b32", "s61", tab(t), "s58"), S("s_and_b32", "s61", "s61", 255), RAW(f"s_cmp_ge_u32 s61, {NF}"), RAW(f"s_cbranch_scc1 K2_S{t}")] + blk + \
                       [RAW(f"s_branch K2_E{t}"), LABEL(f"K2_S{t}")] + sv + [LABEL(f"K2_E{t}")]
                blk = None; continue
            (out if blk is None else blk).append(x)
        return out
    code = head + body(True) + [LABEL("K2_PROD")] + body(False) + [LABEL("K2_FIN")] + fix_hazards(STAMP_OUT(7, 65536 * 4))[0]
    check_scc(code)
    code.append(LABEL("K2_END"))
    print(f"K2: {len(code)} instrs", file=sys.stderr)
    return code

def kd(name, vg, acc):
    return f""".p2align 6
.amdhsa_kernel {name}
  .amdhsa_next_free_vgpr {vg}
  .amdhsa_next_free_sgpr 102
  .amdhsa_accum_offset {acc}
  .amdhsa_group_segment_fixed_size 0
  .amdhsa_kernarg_size 96
  .amdhsa_user_sgpr_count 2
  .amdhsa_user_sgpr_kernarg_segment_ptr 1
  .amdhsa_system_sgpr_workgroup_id_x 1
.end_amdhsa_kernel
"""
def build():
    ref = open(f"cdna_kernels/{NAME}.s.ref").read().split("\n")
    head = [l for l in ref if l.startswith(";") and "@launch" not in l and "Override" not in l and "grid=ceil" not in l]
    s = "\n".join(head) + "\n"
    s += "; @launch kernel=attn_kernel grid=(256,1,1) block=(256,1,1) lds=163840\n"
    s += "; @launch kernel=proj_kernel grid=(224,1,1) block=(256,1,1) lds=98304\n"
    s += '.amdgcn_target "amdgcn-amd-amdhsa--gfx950"\n.text\n'
    for nm, fn in (("attn_kernel", k1), ("proj_kernel", k2)):
        s += f".globl {nm}\n.p2align 8\n.type {nm},@function\n{nm}:\n" + text(fn()) + "  s_endpgm\n"
    s += '.section .rodata,"a"\n' + kd("attn_kernel", 512, 256) + kd("proj_kernel", 320, 256)
    return s
if __name__ == "__main__":
    for a in sys.argv[2:]:
        k, v = a.split("="); OPT[k] = type(OPT[k])(v)
    open(sys.argv[1], "w").write(build())
```

```python
import sys, struct, re
from asmlib import *
NAME = "recurrent_scan__sliding_block_cached__glu_gated_bilinear__prompt"
def f2u(x): return struct.unpack("<I", struct.pack("<f", x))[0]
LOG2E = 1.4426950408889634
CSC = LOG2E / 16.0
NKAP = 368
OPT = dict(D=7, W=4, dc=3, lag=11, su2=1, s0=7, rot=1, sd=28, budget=6, st_mods=" sc1", dma_gap=4, stamp=0, touch=1, touch2=1, thr=30, tat=0, s2at=5, k2a="", k2b="", k1d="", scr=0, lf=2, k2bar=0, LA=2, xo=10, RD=3, LB=8, AK=0, silu=1, xat=160, fa=13, fb=7, ost="", tp="q0:30,q1:80,q2:130,q3:180,k0:234,k1:310,v0:390,v1:560,d0:600,o0:690,o1:740")
def STAMP(i):
    return ([I(f"s_memtime s[{72+2*i}:{73+2*i}]", "other", cost=1)] + ([I("s_memrealtime s[100:101]", "other")] if i == 0 else [])) if OPT["stamp"] else []
def STAMP_OUT(n, base):
    if not OPT["stamp"]: return []
    o = [RAW("s_waitcnt lgkmcnt(0) vmcnt(0)"), I(f"s_memtime s[{72+2*n}:{73+2*n}]", "other"), I("s_memrealtime s[62:63]", "other"), RAW("s_waitcnt lgkmcnt(0)")]
    o += [S("s_add_u32", "s4", "s54", hex((32 << 20) + base)), S("s_addc_u32", "s5", "s55", 0), S("s_mov_b32", "s6", 1 << 20), S("s_mov_b32", "s7", "0x20000")]
    o += [S("s_lshl_b32", "s3", "s2", 8), S("s_lshl_b32", "s61", "s56", 6), S("s_add_u32", "s3", "s3", "s61"), V("v_mov_b32", "v1", "s3")]
    for i in range(n + 1):
        o += [V("v_mov_b32", "v2", f"s{72+2*i}"), BST(1, "v2", "v1", "s[4:7]", 0, 4 * i)]
    o += [V("v_mov_b32", "v2", "s100"), BST(1, "v2", "v1", "s[4:7]", 0, 56), V("v_mov_b32", "v2", "s62"), BST(1, "v2", "v1", "s[4:7]", 0, 60)]
    return o


def srd(n, lo, hi, size):
    return [S("s_mov_b32", f"s{n}", lo), S("s_mov_b32", f"s{n+1}", hi), S("s_mov_b32", f"s{n+2}", size), S("s_mov_b32", f"s{n+3}", "0x20000")]
def srd_off(n, p, soff, total):
    return [S("s_add_u32", f"s{n}", f"s{p}", soff), S("s_addc_u32", f"s{n+1}", f"s{p+1}", 0),
            S("s_sub_u32", f"s{n+2}", hex(total), soff), S("s_mov_b32", f"s{n+3}", "0x20000")]

class AReg:
    def __init__(s, v): s.v, s.base = v, 0
    def at(s, a):
        pre = []
        if not (0 <= a - s.base <= 65535):
            nb = (a // 65536) * 65536
            pre.append(V("v_add_u32", f"v{s.v}", hex((nb - s.base) & 0xffffffff), f"v{s.v}"))
            s.base = nb
        return pre, a - s.base

X0 = 32; R0 = 144; R1 = 176; QF01 = 208; CIN = 240
SA = [160, 192, 128]
RING = 224
ST = 112
SLOT = 32768
def XOFF(g): return (1 + (g >> 1)) * SLOT + (g & 1) * 4096
def QF(ks):
    p = ks >> 2
    return (QF01 + 4 * ks) if p < 2 else ((R0 if p == 2 else R1) + 4 * (ks & 3))
def PF(kap):
    j = kap >> 1
    b = (X0 + 8 * j) if j < 14 else (SA[0] + 8 * (j - 14))
    return b + 4 * (kap & 1)
def sbuf(j): return SA[j % 3] if j < 12 else SA[j & 1]

def k1_slow():
    c = []; A = c.append; E = c.extend
    W = lambda t: A(RAW(t))
    KF = 32; SB = 96; PB = 112; VF = 120
    W("s_waitcnt vmcnt(0) lgkmcnt(0)"); A(NOP(8)); A(NOP(8))
    A(V("v_and_b32", "v1", 31, "v0")); A(V("v_lshrrev_b32", "v2", 5, "v0"))
    A(V("v_lshlrev_b32", "v3", 9, "v1")); A(V("v_lshl_add_u32", "v3", "v2", 4, "v3"))
    A(V("v_lshlrev_b32", "v4", 11, "v2")); A(V("v_lshl_add_u32", "v4", "v1", 1, "v4"))
    A(V("v_add_u32", "v5", 4096, "v4"))
    A(V("v_mov_b32", "v30", "0xff800000")); A(V("v_mov_b32", "v14", 0))
    for i in range(128): A(V("v_accvgpr_write_b32", f"a{i}", 0))
    def stile():
        for ks in range(16): A(BLD(4, rs("v", KF + 4 * ks, 4), "v3", "s[20:23]", "s62", 32 * ks, "z"))
        W("s_waitcnt vmcnt(0)")
        for ks in range(16): A(MFMA(rs("v", SB, 16), rs("v", KF + 4 * ks, 4), rs("v", QF(ks), 4), rs("v", SB, 16) if ks else "0"))
        A(NOP(8)); A(NOP(8))
    A(S("s_mov_b32", "s62", 0)); A(LABEL("K1_SL1")); A(NOP(8))
    stile()
    for i in range(0, 16, 2): A(V("v_max3_f32", "v30", "v30", f"v{SB+i}", f"v{SB+i+1}"))
    A(S("s_add_u32", "s62", "s62", 16384)); W("s_cmp_lt_u32 s62, 0x40000"); W("s_cbranch_scc1 K1_SL1")
    E([V("v_mov_b32", "v31", "v30"), NOP(2), V("v_permlane32_swap_b32", "v30", "v31"), V("v_max_f32", "v30", "v30", "v31")])
    A(S("s_mov_b32", "s62", 0)); A(LABEL("K1_SL2")); A(NOP(8))
    stile()
    for i in range(16):
        A(V("v_sub_f32", f"v{SB+i}", f"v{SB+i}", "v30")); A(V("v_exp_f32", f"v{SB+i}", f"v{SB+i}"))
    for i in range(16): A(V("v_add_f32", "v14", "v14", f"v{SB+i}"))
    for i in range(8): A(V("v_cvt_pk_bf16_f32", f"v{PB+i}", f"v{SB+2*i}", f"v{SB+2*i+1}"))
    for e in range(2):
        A(S("s_add_u32", "s63", "s62", 8192 * e))
        for T in range(8):
            r = VF + 4 * (T & 1)
            for i in range(8):
                A(I(f"buffer_load_ushort v{128 + i}, v{5 if i >= 4 else 4}, s[24:27], s63 offen offset:{(i & 3) * 512 + 64 * T}", "vld", regs_of("v4") + regs_of("v5") + regs_of("s63"), regs_of(f"v{128 + i}"), stage="z"))
            W("s_waitcnt vmcnt(0)")
            for i in range(4): A(V("v_lshl_or_b32", f"v{r+i}", f"v{129 + 2*i}", 16, f"v{128 + 2*i}"))
            A(MFMA(rs("a", 16 * T, 16), rs("v", r, 4), rs("v", PB + 4 * e, 4), rs("a", 16 * T, 16)))
    A(NOP(8)); A(NOP(8))
    A(S("s_add_u32", "s62", "s62", 16384)); W("s_cmp_lt_u32 s62, 0x40000"); W("s_cbranch_scc1 K1_SL2")
    E([V("v_mov_b32", "v15", "v14"), NOP(2), V("v_permlane32_swap_b32", "v14", "v15"), V("v_add_f32", "v14", "v14", "v15"), V("v_rcp_f32", "v25", "v14")])
    A(S("s_lshl_b32", "s70", "s6", 14))
    for fi in range(16):
        dq = 16 + 4 * (fi & 1)
        for j in range(4):
            r = 8 * fi + 2 * j
            E([V("v_accvgpr_read_b32", "v26", f"a{r}"), V("v_accvgpr_read_b32", "v27", f"a{r+1}"), V("v_mul_f32", "v26", "v26", "v25"), V("v_mul_f32", "v27", "v27", "v25"),
               V("v_cvt_pk_bf16_f32", f"v{dq+j}", "v26", "v27")])
        if fi and fi % 4 == 0: A(S("s_add_u32", "s70", "s70", 4096))
        A(BST(4, rs("v", dq, 4), "v24", "s[28:31]", "s70", (fi & 3) * 1024, OPT["st_mods"]))
        W("s_waitcnt vmcnt(0)")
    code, nn = fix_hazards(c)
    return code

def k1():
    c = []
    A = c.append; E = c.extend
    A(RAW("s_cmp_ge_u32 s2, 256")); A(RAW("s_cbranch_scc1 K1_END"))
    if OPT["scr"]:
        E([S("s_and_b32", "s3", "s2", 7), S("s_lshl_b32", "s3", "s3", 3), S("s_bfe_u32", "s4", "s2", hex((3 << 16) | 3)), S("s_or_b32", "s3", "s3", "s4"),
           S("s_andn2_b32", "s4", "s2", 63), S("s_or_b32", "s3", "s3", "s4"), RAW("s_cmp_lt_u32 s2, 256"), S("s_cselect_b32", "s2", "s3", "s2")])
    E(STAMP(0))
    A(RAW("s_load_dwordx16 s[32:47], s[0:1], 0")); A(RAW("s_load_dwordx8 s[48:55], s[0:1], 64"))
    A(V("v_lshrrev_b32", "v26", 6, "v0")); A(V("v_and_b32", "v0", 63, "v0"))
    A(V("v_readfirstlane_b32", "s56", "v26"))
    A(S("s_and_b32", "s7", "s2", 3)); A(S("s_lshr_b32", "s5", "s2", 3))
    A(S("s_and_b32", "s6", "s5", 3)); A(S("s_lshl_b32", "s3", "s7", 2)); A(S("s_add_u32", "s6", "s6", "s3"))
    A(S("s_lshr_b32", "s3", "s6", 1))
    A(S("s_and_b32", "s4", "s2", 4)); A(S("s_lshl_b32", "s4", "s4", 1)); A(S("s_lshr_b32", "s61", "s5", 2)); A(S("s_add_u32", "s4", "s4", "s61"))
    A(S("s_lshl_b32", "s57", "s56", 13)); A(S("s_lshl_b32", "s60", "s56", 12)); A(S("s_mul_i32", "s59", "s56", 7168))
    A(S("s_lshr_b32", "s58", "s56", 1)); A(S("s_lshl_b32", "s58", "s58", 7)); A(S("s_add_u32", "s58", "s58", "s57"))
    A(S("s_mov_b32", "s67", "0xffff0000"))
    A(S("s_and_b32", "s7", "s5", 3)); A(S("s_lshl_b32", "s7", "s7", 1)); A(S("s_add_u32", "s7", "s7", "s61"))
    A(S("s_sub_u32", "s62", "s7", 7)); A(RAW("s_cmp_ge_u32 s7, 7")); A(S("s_cselect_b32", "s7", "s62", "s7"))
    if not OPT["rot"]: A(S("s_mov_b32", "s7", 0))
    A(S("s_lshl_b32", "s63", "s7", 7))
    A(V("v_lshrrev_b32", "v27", 3, "v0")); A(V("v_and_b32", "v28", 7, "v0"))
    A(V("v_lshrrev_b32", "v29", 4, "v0")); A(V("v_xor_b32", "v30", "v28", "v29"))
    A(V("v_lshlrev_b32", "v30", 4, "v30")); A(V("v_xor_b32", "v31", 64, "v30"))
    A(S("s_mul_i32", "s61", "s56", 32 * 896))
    A(V("v_mul_u32_u24", "v16", 896, "v27")); A(V("v_add_u32", "v16", "s61", "v16"))
    A(V("v_add_u32", "v1", "v16", "v30")); A(V("v_add_u32", "v2", "v16", "v31")); A(V("v_add_u32", "v2", 6144, "v2"))
    A(V("v_add_u32", "v3", 12288, "v1")); A(V("v_add_u32", "v4", 12288, "v2"))
    A(RAW("s_waitcnt lgkmcnt(0)"))
    A(S("s_mul_i32", "s61", "s4", 128 * 896)); E(srd_off(8, 32, "s61", 2048 * 896))
    xd = []
    for g in range(7):
        for q in range(4):
            adv = [S("s_add_u32", "s63", "s63", 128), RAW("s_cmp_ge_u32 s63, 896"), S("s_cselect_b32", "s63", 0, "s63")] if g else []
            xd.append((adv + [S("s_add_u32", "m0", "s57", XOFF(g))] if q == 0 else []) + [DMA(f"v{1+q}", "s[8:11]", "s63", q * 1024, f"x{g}")])
    head = c; c = []; A = c.append; E = c.extend
    A(RAW("s_cmp_ge_u32 s56, 2")); A(S("s_cselect_b32", "s68", "s46", "s44")); A(S("s_cselect_b32", "s69", "s47", "s45"))
    A(S("s_mul_i32", "s61", "s6", 224)); E(srd_off(12, 68, "s61", 448 * 3584))
    A(S("s_mul_i32", "s68", "s7", 64 * 3584))
    A(S("s_lshl_b32", "s61", "s6", 9)); A(S("s_sub_u32", "s16", "s38", 4096)); A(S("s_subb_u32", "s17", "s39", 0)); E(srd_off(16, 16, "s61", 448 * 8192 + 4096))
    A(S("s_lshl_b32", "s61", "s3", 20)); A(S("s_add_u32", "s61", "s61", 1536 * 512))
    E(srd_off(20, 34, "s61", 8 << 20)); E(srd_off(24, 36, "s61", 8 << 20))
    A(S("s_mul_i32", "s61", "s4", 4 * NKAP * 1024)); E(srd_off(28, 54, "s61", 64 * NKAP * 1024))
    A(S("s_lshl_b32", "s70", "s6", 14))
    A(S("s_mul_i32", "s71", "s6", 7168)); A(S("s_add_u32", "s71", "s71", 256 * 1024))
    A(S("s_and_b32", "s61", "s56", 1)); A(S("s_mul_i32", "s61", "s61", 32 * 3584))
    for q in range(7):
        A(V("v_add_u32", "v16", 64 * q, "v0")); A(V("v_mul_u32_u24", "v17", 4682, "v16")); A(V("v_lshrrev_b32", "v17", 16, "v17"))
        A(V("v_mul_u32_u24", "v18", 14, "v17")); A(V("v_sub_u32", "v18", "v16", "v18"))
        A(V("v_mul_u32_u24", "v17", 3584, "v17")); A(V("v_lshl_add_u32", "v17", "v18", 4, "v17"))
        A(V("v_add_u32", "v17", "s61", "v17")); A(V("v_subrev_u32", f"v{248+q}", (q & 3) * 1024, "v17"))
    def dma_stage(n):
        slot = (n % 5) * SLOT
        out = []
        sr = [62, 69, 64, 65]
        def grp(m0s, m0i, soff, srdn, vs, gi):
            s_ = sr[(2 * n + gi) & 3]
            first = [S("s_add_u32", "m0", m0s, m0i)]
            if soff is None:
                s_ = 68
                if n and not gi: first = [[S("s_add_u32", "s68", "s68", 64 * 3584), RAW(f"s_cmp_ge_u32 s68, {448 * 3584}"), S("s_cselect_b32", "s68", 0, "s68")]] + first
            elif soff == 0: s_ = None
            elif soff == "same": s_ = sr[(2 * n) & 3]
            else: first.append(S("s_mov_b32", f"s{s_}", hex(soff)))
            for k, v in enumerate(vs):
                out.append((first if k == 0 else []) + [DMA(f"v{v}", f"s[{srdn}:{srdn+3}]", 0 if s_ is None else f"s{s_}", k * 1024, n, OPT["k1d"])])
        if n < 7:
            grp("s58", slot, None, 12, [248, 249, 250, 251], 0); grp("s58", slot + 4096, None, 12, [252, 253, 254], 1)
        elif n < 15:
            p, hs = (n - 7) >> 1, (n - 7) & 1
            b_ = 240 + 7 * hs
            grp("s59", slot, p * 128, 16, [b_, b_ + 1, b_ + 2, b_ + 3], 0); grp("s59", slot + 4096, "same" if p else 0, 16, [b_ + 4, b_ + 5, b_ + 6], 1)
        elif n < 23:
            t0 = 2 * (n - 15)
            grp("s60", slot, t0 * 16384, 20, [1, 2, 3, 4], 0); grp("s60", slot + 16384, (t0 + 1) * 16384, 20, [1, 2, 3, 4], 1)
        else:
            qd, hs = (n - 23) >> 1, (n - 23) & 1
            so = hs * 256 * 512 + qd * 128
            grp("s57", slot, so, 24, [1, 2, 3, 4], 0); grp("s57", slot + 4096, so + 32 * 512, 24, [1, 2, 3, 4], 1)
        return out
    m1 = len(c)
    A(S("s_lshr_b32", "s61", "s5", 2)); A(S("s_lshl_b32", "s61", "s61", 2)); A(S("s_add_u32", "s61", "s61", "s56"))
    A(V("v_mov_b32", "v244", "0x80000000"))
    A(S("s_mul_i32", "s66", "s61", 14)); A(V("v_add_u32", "v16", "s66", "v0")); A(V("v_lshlrev_b32", "v17", 13, "v16")); A(V("v_add_u32", "v17", 4096, "v17"))
    A(V("v_cmp_gt_u32", "vcc", 14, "v0")); A(V("v_cndmask_b32", "v17", "v244", "v17", "vcc")); A(V("v_accvgpr_write_b32", f"a{ST+20}", "v17"))
    A(S("s_and_b32", "s66", "s6", 1)); A(S("s_lshl_b32", "s66", "s66", 5)); A(S("s_add_u32", "s66", "s66", "s61")); A(S("s_lshl_b32", "s66", "s66", 4))
    A(V("v_add_u32", "v16", "s66", "v0")); A(V("v_cmp_gt_u32", "vcc", 16, "v0"))
    A(V("v_lshlrev_b32", "v18", 7, "v16")); A(V("v_cndmask_b32", "v18", "v244", "v18", "vcc")); A(V("v_accvgpr_write_b32", f"a{ST+21}", "v18"))
    A(V("v_lshrrev_b32", "v18", 1, "v16")); A(V("v_lshlrev_b32", "v17", 9, "v18")); A(V("v_and_b32", "v16", 1, "v16")); A(V("v_lshl_add_u32", "v18", "v16", 7, "v17"))
    A(V("v_cndmask_b32", "v18", "v244", "v18", "vcc")); A(V("v_accvgpr_write_b32", f"a{ST+22}", "v18"))
    A(S("s_lshl_b32", "s66", "s2", 2)); A(S("s_add_u32", "s66", "s66", "s56")); A(S("s_lshl_b32", "s66", "s66", 4)); A(V("v_add_u32", "v16", "s66", "v0"))
    A(V("v_lshlrev_b32", "v16", 7, "v16")); A(V("v_cndmask_b32", "v16", "v244", "v16", "vcc")); A(V("v_accvgpr_write_b32", f"a{ST+23}", "v16"))
    A(V("v_add_u32", "v16", hex(1 << 21), "v16")); A(V("v_accvgpr_write_b32", f"a{ST+24}", "v16"))
    E(srd(92, "s40", "s41", 4096 * 896) + srd(96, "s48", "s49", 1792 * 896)); A(S("s_mov_b32", "s66", 131072))
    def touch(kind, k):
        u = V("v_accvgpr_read_b32", "v5", f"a{ST + dict(q=20, k=21, v=22, o=23 + k, d=23)[kind]}")
        sr, so, im = dict(q=(16, 0, 128 * k), k=(20, "s66" if k else 0, 0), v=(24, 0, 256 * k), o=(92, 0, 0), d=(96, 0, 0))[kind]
        return [u, BLD(1, "a200", "v5", f"s[{sr}:{sr+3}]", so, im, "t")]
    def stash(i, v): A(V("v_accvgpr_write_b32", f"a{ST+i}", v))
    A(V("v_lshrrev_b32", "v19", 2, "v0")); A(V("v_and_b32", "v19", 4, "v19")); A(V("v_xor_b32", "v19", "v28", "v19")); A(V("v_lshlrev_b32", "v19", 4, "v19"))
    A(V("v_lshl_add_u32", "v16", "v27", 13, "v19"))
    A(S("s_mul_i32", "s61", "s56", 7)); A(S("s_lshl_b32", "s4", "s7", 3)); A(S("s_add_u32", "s61", "s61", "s4"))
    for e in range(14):
        hs, q = divmod(e, 7)
        A(S("s_add_u32", "s4", "s61", 28 * hs + q)); A(S("s_sub_u32", "s3", "s4", 56)); A([RAW("s_cmp_ge_u32 s4, 56"), S("s_cselect_b32", "s4", "s3", "s4")])
        A(S("s_lshl_b32", "s4", "s4", 16)); A(S("s_add_u32", "s4", "s4", 4096 - (q & 3) * 1024)); A(V("v_add_u32", "v17", "s4", "v16")); stash(25 + e, "v17")
    A(S("s_lshl_b32", "s61", "s56", 7))
    A(V("v_lshlrev_b32", "v16", 9, "v27")); A(V("v_add_u32", "v16", "s61", "v16"))
    A(V("v_add_u32", "v17", "v16", "v30")); stash(4, "v17"); A(V("v_add_u32", "v17", 6144, "v17")); stash(6, "v17")
    A(V("v_add_u32", "v17", "v16", "v31")); A(V("v_add_u32", "v17", 3072, "v17")); stash(5, "v17"); A(V("v_add_u32", "v17", 6144, "v17")); stash(7, "v17")
    A(S("s_lshl_b32", "s61", "s56", 15))
    A(V("v_lshl_add_u32", "v16", "v27", 9, "v19")); A(V("v_add_u32", "v16", "s61", "v16"))
    for q in range(4):
        stash(8 + q, "v16")
        if q < 3: A(V("v_add_u32", "v16", 3072, "v16"))
    A(V("v_lshlrev_b32", "v16", 7, "v22")); A(V("v_lshrrev_b32", "v17", 1, "v22")); A(V("v_lshl_add_u32", "v16", "v17", 6, "v16")); A(V("v_lshl_add_u32", "v16", "v21", 5, "v16"))
    A(V("v_lshl_add_u32", "v17", "v20", 9, "v16")); A(V("v_lshl_add_u32", "v17", "v23", 3, "v17")); stash(18, "v17")
    A(V("v_xor_b32", "v17", 64, "v17")); stash(19, "v17")
    A(V("v_and_b32", "v18", 1, "v23")); A(V("v_lshlrev_b32", "v18", 1, "v18")); A(V("v_lshrrev_b32", "v17", 1, "v23")); A(V("v_or_b32", "v18", "v18", "v17"))
    A(V("v_lshl_add_u32", "v17", "v20", 10, "v16")); A(V("v_lshl_add_u32", "v17", "v18", 3, "v17")); stash(12, "v17")
    A(V("v_xor_b32", "v17", 64, "v17")); stash(13, "v17")
    m2 = len(c)
    A(V("v_lshrrev_b32", "v20", 5, "v0")); A(V("v_bfe_u32", "v21", "v0", 4, 1)); A(V("v_bfe_u32", "v22", "v0", 2, 2)); A(V("v_and_b32", "v23", 3, "v0"))
    A(V("v_lshl_add_u32", "v17", "v20", 3, "v22")); A(V("v_mul_u32_u24", "v17", 224, "v17")); A(V("v_lshl_add_u32", "v17", "v23", 3, "v17"))
    A(V("v_mul_u32_u24", "v18", 16512, "v21")); A(V("v_add_u32", "v25", "v17", "v18"))
    A(V("v_bfe_u32", "v16", "v0", 3, 2)); A(V("v_lshlrev_b32", "v16", 10, "v16")); A(V("v_lshl_add_u32", "v16", "v28", 7, "v16"))
    A(V("v_bfe_u32", "v17", "v0", 1, 3)); A(V("v_xor_b32", "v17", "v17", "v20")); A(V("v_lshl_add_u32", "v16", "v17", 4, "v16"))
    A(S("s_add_u32", "s61", "s57", SLOT))
    for sp in range(4):
        A(V("v_xor_b32", "v17", 32 * sp, "v16")); stash(14 + sp, "v17"); A(V("v_add_u32", f"v{8+sp}", "s61", "v17"))
    A(S("s_mul_i32", "s61", "s56", NKAP * 1024)); A(V("v_lshlrev_b32", "v24", 4, "v0")); A(V("v_add_u32", "v24", "s61", "v24"))
    A(V("v_mov_b32", "v26", "0x3f803f80"))
    for r in (12, 13, 14, 15): A(V("v_mov_b32", f"v{r}", 0))
    def ren(x):
        if isinstance(x, list) or x.k == "salu" or x.k == "other": return x
        op, rest = x.t.split(" ", 1)
        o = [re.sub(r"^v(1[6-9])$", lambda m: f"v{int(m.group(1)) + 224}", y) for y in rest.split(", ")]
        return V(op, *o)
    setup = c[m2:] + c[:m1]; setup2 = [ren(x) for x in c[m1:m2]]; c = head; A = c.append; E = c.extend
    setup2 += [[S("s_add_u32", "s8", "s54", hex(FLAGO)), S("s_addc_u32", "s9", "s55", 0)], S("s_mov_b32", "s10", 65536), S("s_lshl_b32", "s61", "s2", 8),
               V("v_lshlrev_b32", "v240", 2, "v0"), V("v_mov_b32", "v241", 0), BST(1, "v241", "v240", "s[8:11]", "s61", 0)]
    xa = [AReg(8 + i) for i in range(4)]
    def xread(g):
        o = [WAITV([f"x{g}"])]
        for sp in range(4):
            pre, off = xa[sp].at(XOFF(g) - SLOT)
            o += pre + [DSR("ds_read_b128", rs("v", X0 + 16 * g + 4 * sp, 4), f"v{8+sp}", off, tag=("x", g, sp))]
        return o
    def stats(g):
        o = [WAITL([("x", g, 3)])]
        for i in range(16):
            r = X0 + 16 * g + i
            o += [V("v_dot2_f32_bf16", f"v{12 + (i & 1)}", f"v{r}", "v26", f"v{12 + (i & 1)}"), V("v_dot2_f32_bf16", f"v{14 + (i & 1)}", f"v{r}", f"v{r}", f"v{14 + (i & 1)}")]
        return o
    fl = lambda l: [y for x in l for y in (x if isinstance(x, list) else [x])]
    S0 = OPT["s0"]
    L = xd[:4 * S0] + dma_stage(0) + xd[4 * S0:] + dma_stage(1) + dma_stage(2)
    LAG = OPT["lag"]
    work = {}
    def at(k, ins): work.setdefault(min(k, len(L) - 1), []).extend(ins)
    per = -(-len(setup) // (LAG if OPT["su2"] else 4 * S0 - 3)); sp_ = 0; k = 2
    while sp_ < len(setup):
        e_ = min(sp_ + per, len(setup))
        while e_ < len(setup) and setup[e_].t.split()[0] in ("s_addc_u32", "s_subb_u32", "s_cselect_b32"): e_ += 1
        at(k, setup[sp_:e_]); sp_ = e_; k += 1
    fl = lambda l: [y for x in l for y in (x if isinstance(x, list) else [x])]
    if OPT["su2"]:
        assert k <= 3 + LAG
        at(2 + LAG, fl(setup2[:-6])); setup2 = setup2[-6:]
    for g in range(7):
        k0 = 4 * g + 3 + LAG + (7 if g >= S0 else 0)
        at(k0, xread(g) + (STAMP(1) if g == 0 else []) + (STAMP(2) if g == 6 else []))
        if g == 6: at(k0, [V("v_mov_b32", "v8", "v25")])
        st_ = stats(g)
        if g == 6: st_ = st_[:17] + STAMP(3) + [WAITV([0]), BAR(), I("@FIRST", "label", cost=0)] + st_[17:]
        for q in range(3): at(k0 + 1 + q, st_[q * 11:(q + 1) * 11] if q < 2 else st_[22:])
    nd = min(len(L), k0 + 4)
    for k in range(nd):
        E(fl(L[k])); E(work.get(k, []))
    rest = L[nd:]
    A(V("v_add_f32", "v12", "v12", "v13")); A(V("v_add_f32", "v14", "v14", "v15"))
    A(V("v_mov_b32", "v13", "v12")); A(V("v_mov_b32", "v15", "v14"))
    A(V("v_permlane32_swap_b32", "v12", "v13")); A(V("v_permlane32_swap_b32", "v14", "v15"))
    A(V("v_add_f32", "v12", "v12", "v13")); A(V("v_add_f32", "v14", "v14", "v15"))
    A(V("v_mul_f32", "v13", hex(f2u(1 / 448.)), "v12"))
    A(V("v_mul_f32", "v14", hex(f2u(1 / 448.)), "v14"))
    A(V("v_fma_f32", "v14", "-v13", "v13", "v14")); A(V("v_max_f32", "v14", 0, "v14"))
    A(V("v_add_f32", "v14", hex(f2u(1e-5)), "v14")); A(V("v_rsq_f32", "v12", "v14"))
    A(V("v_mul_f32", "v12", hex(f2u(CSC)), "v12"))
    A(V("v_mul_f32", "v13", "v13", "v12")); A(V("v_sub_f32", "v13", 0, "v13"))
    A(V("v_mov_b32", "v14", 0)); A(V("v_mov_b32", "v15", 0))
    pro = c

    mf = []; reads = []
    D = OPT["D"]
    head = {}; tail_ = {}; bar = {}
    state = dict(stage=0)
    def ring(i): return RING + 4 * (i % 8)
    def H(g, ins): head.setdefault(max(g, -1), []).extend(ins)
    def add(stage, rd_fn, d, b, cc, pre=None):
        i = len(mf)
        if pre: H(i - D, pre)
        if stage != state["stage"]:
            H(i - D, [WAITV([stage]), BAR()]); bar[stage] = i - D; state["stage"] = stage
        ins = rd_fn(ring(i), i)
        H(i - D, ins)
        mf.append(MFMA(d, rs("a", ring(i), 4), b, cc, need=[x.tag for x in ins if x.k == "dsr"]))
    def tr2(ar, a0, a1):
        def f(rg, i):
            p0, o0 = ar.at(a0); p1, o1 = ar.at(a1); assert not p1
            return p0 + [DSR("ds_read_b64_tr_b16", rs("a", rg, 2), f"v{ar.v}", o0, tag=(i, 0)), DSR("ds_read_b64_tr_b16", rs("a", rg + 2, 2), f"v{ar.v}", o1, tag=(i, 1))]
        return f
    def unst(dst, i): return V("v_accvgpr_read_b32", f"v{dst}", f"a{ST+i}")
    ga = AReg(8)
    for s in range(28):
        n, ks = s >> 2, s & 3
        for tt in range(7):
            a0 = (n % 5) * SLOT + (ks >> 1) * 8192 + 16 * (ks & 1) * 224 + 32 * tt
            d = rs("a", 16 * tt, 16)
            add(n, tr2(ga, a0, a0 + 4 * 224), d, rs("v", X0 + 4 * s, 4), "0" if s == 0 else d)
    iWQ = len(mf)
    wa = [AReg(8), AReg(9)]
    for p in range(4):
        for s in range(28):
            n, ks = 7 + 2 * p + s // 14, s % 14
            for th in range(2):
                a0 = (n % 5) * SLOT + ks * 2048
                d = rs("v", (R1 if p & 1 else R0) + 16 * th, 16)
                add(n, tr2(wa[th], a0, a0 + 512), d, rs("v", X0 + 4 * s, 4), "0" if s == 0 else d,
                    pre=[unst(8, 12), unst(9, 13)] if (p, s, th) == (0, 0, 0) else None)
    iS = len(mf)
    ka = [AReg(8 + i) for i in range(4)]
    for j in range(16):
        n = 15 + (j >> 1)
        for ks in range(16):
            a0 = (n % 5) * SLOT + (j & 1) * 16384 + (ks >> 2) * 4096
            def f(rg, i, a0=a0, ks=ks):
                p0, o0 = ka[ks & 3].at(a0)
                return p0 + [DSR("ds_read_b128", rs("a", rg, 4), f"v{8 + (ks & 3)}", o0, tag=(i, 0))]
            d = rs("v", sbuf(j), 16)
            add(n, f, d, rs("v", QF(ks), 4), d if ks else ("0" if j < 2 else rs("v", CIN, 16)),
                pre=[unst(8 + i, 14 + i) for i in range(4)] if (j, ks) == (0, 0) else None)
    iPV = len(mf)
    va = [AReg(8), AReg(9)]
    def oacc(T): return (("a", 32 * ((T >> 1) & 1) + 16 * (T & 1)) if T < 6 else ("v", CIN if T == 6 else SA[1]))
    olast = {}; ofirst = {}
    for qd in range(4):
        order = [(kap, th) for kap in range(32) for th in range(2)] if qd < 3 else [(kap, th) for th in range(2) for kap in range(32)]
        for kap, th in order:
            n = 23 + 2 * qd + (kap >> 4)
            a0 = (n % 5) * SLOT + (kap & 15) * 2048
            k_, b_ = oacc(2 * qd + th); d = rs(k_, b_, 16)
            ofirst.setdefault(2 * qd + th, len(mf)); olast[2 * qd + th] = len(mf)
            add(max(n, state["stage"]), tr2(va[th], a0, a0 + 1024), d, rs("v", PF(kap), 4), d if kap else "0",
                pre=[unst(8, 18), unst(9, 19)] if (qd, kap, th) == (0, 0, 0) else None)
    W = OPT["W"]
    for i in range(0, len(mf), W): tail_.setdefault(i - 1, []).append(WAITL(mf[min(i + W, len(mf)) - 1].need))
    dstream = []
    bar[0] = -1; bar[31] = len(mf); gp = -2
    for ins in rest:
        g = gp + 1
        while g in tail_ and g >= 0: g += 1
        for x in ins[:-1]: dstream.append(Item(x, after=g - 3, before=g + 1))
        dstream.append(Item(ins[-1], after=g, before=g + 1)); gp = g
    o3 = gp + 1
    for n in range(3, 31):
        g0 = bar[n - 3] + 1 if n >= 5 else o3 + (n - 3) * 14
        g1 = bar[n - 2] if n >= 5 else g0 + 14
        if n in (7, 15, 23):
            base = {7: 0, 15: 4, 23: 8}[n]
            if n == 7:
                for q in range(14): dstream.append(Item(unst(240 + q, 25 + q), after=g0 - 1, before=g0 + 4))
                g0 += 3
            else:
                for q in range(4): dstream.append(Item(unst(1 + q, base + q), after=g0 - 1, before=g0 + 2))
                g0 += 1
        grp = dma_stage(n)
        for k, ins in enumerate(grp):
            g = max(g0 + 1 + (k * (g1 - g0 - 2)) // len(grp), gp + 1)
            while g in tail_ or any(x.k == "bar" for x in head.get(g, [])): g += 1
            for x in ins[:-1]: dstream.append(Item(x, after=g - 3, before=g))
            ins[-1].cost = OPT["dc"]; gp = g
            dstream.append(Item(ins[-1], after=g, before=g + 1))
    vs = []; es = []
    def P(ins, after=-1, before=10**9):
        for x in ins: vs.append(Item(x, after=after, before=before))
    for s in range(28):
        for j in range(4):
            r = X0 + 4 * s + j; t0, t1 = (16, 17) if j & 1 else (18, 19)
            P([V("v_lshlrev_b32", f"v{t0}", 16, f"v{r}"), V("v_and_b32", f"v{t1}", "s67", f"v{r}"),
               V("v_fma_f32", f"v{t0}", f"v{t0}", "v12", "v13"), V("v_fma_f32", f"v{t1}", f"v{t1}", "v12", "v13"),
               V("v_cvt_pk_bf16_f32", f"v{r}", f"v{t0}", f"v{t1}")], before=7 * s)
    def qconv(p):
        rb = R1 if p & 1 else R0
        aft = iWQ + 56 * (p + 1) + 1
        for f in range(4):
            ks = 4 * p + f
            bef = (iWQ + 56 * (p + 2)) if p < 2 else (iS if p == 2 else iS + ks)
            P([V("v_cvt_pk_bf16_f32", f"v{QF(ks)+j}", f"v{rb + 8*f + 2*j}", f"v{rb + 8*f + 2*j + 1}") for j in range(4)], after=aft, before=min(bef, iS + ks))
    def guepi(tt):
        dq = 16 + 4 * (tt & 1)
        for j in range(4):
            P([V("v_accvgpr_read_b32", "v26", f"a{16*tt + 2*j}"), V("v_accvgpr_read_b32", "v27", f"a{16*tt + 8 + 2*j}"),
               V("v_accvgpr_read_b32", "v28", f"a{16*tt + 2*j + 1}"), V("v_accvgpr_read_b32", "v29", f"a{16*tt + 8 + 2*j + 1}"),
               V("v_mul_f32", "v26", "v26", "v27"), V("v_mul_f32", "v28", "v28", "v29"),
               V("v_cvt_pk_bf16_f32", f"v{dq+j}", "v26", "v28")], after=iWQ + 1, before=iPV)
        if tt == 4: P([S("s_add_u32", "s71", "s71", 4096)])
        P([BST(4, rs("v", dq, 4), "v24", "s[28:31]", "s71", (tt & 3) * 1024, OPT["st_mods"])])
    ts = [Item(x, after=0, before=(OPT["sd"] * (k + 1)) // len(setup2) + 2) for k, x in enumerate(setup2)]
    for spec in OPT["tp"].split(","):
        if spec:
            for x in touch(spec[0], int(spec[1])): ts.append(Item(x, after=int(spec[3:]), before=int(spec[3:]) + 8))
    for tt in range(3): guepi(tt)
    qconv(0)
    for tt in range(3, 7): guepi(tt)
    qconv(1); qconv(2); qconv(3)
    for j in range(16):
        b = sbuf(j); aft = iS + 16 * j + 15 + 2
        nxt = [k for k in range(j + 1, 16) if sbuf(k) == b]
        bef = iS + 16 * nxt[0] if nxt else iPV + 4 * j
        if j == 15: bef = iPV + 4 * j
        if j == 0:
            ins = [V("v_max3_f32", "v30", f"v{b}", f"v{b+1}", f"v{b+2}")]
            for i in range(3, 15, 2): ins.append(V("v_max3_f32", "v30", "v30", f"v{b+i}", f"v{b+i+1}"))
            ins += [V("v_max_f32", "v30", "v30", f"v{b+15}"), V("v_mov_b32", "v31", "v30"), NOP(2), V("v_permlane32_swap_b32", "v30", "v31"), V("v_max_f32", "v30", "v30", "v31")]
            P(ins, after=aft, before=iS + 32); mx = vs[-1]
            P([V("v_sub_f32", f"v{CIN+i}", 0, "v30") for i in range(16)], after=aft, before=iS + 32)
        for i in range(0, 16, 2):
            ex = []
            for r in (b + i, b + i + 1):
                if j < 2: es.append(Item(V("v_sub_f32", f"v{r}", f"v{r}", "v30"), after=aft, before=bef - 1, dep=mx))
                ex.append(Item(V("v_exp_f32", f"v{r}", f"v{r}"), after=aft, before=bef - 1)); es.append(ex[-1])
            vs.append(Item(V("v_add_f32", "v14", "v14", f"v{b+i}"), before=bef, dep=ex[0], lag=1))
            vs.append(Item(V("v_add_f32", "v15", "v15", f"v{b+i+1}"), before=bef, dep=ex[1], lag=1))
            vs.append(Item(V("v_cvt_pk_bf16_f32", f"v{PF(2*j) + (i >> 1)}", f"v{b+i}", f"v{b+i+1}"), before=bef, dep=ex[1], lag=1))
    P([V("v_add_f32", "v14", "v14", "v15"), V("v_mov_b32", "v15", "v14"), NOP(2), V("v_permlane32_swap_b32", "v14", "v15"),
       V("v_add_f32", "v14", "v14", "v15"), V("v_rcp_f32", "v25", "v14"), V("v_cmp_ngt_f32", "vcc", hex(f2u(2.0 ** OPT["thr"])), "v14")])
    for T in range(8):
        k_, b_ = oacc(T); aft = min(olast[T] + 2, len(mf) - 1)
        bef = ofirst[T + 4] if T + 4 < 6 else 10**9
        for e in range(2):
            dq = 16 + 4 * e
            for j in range(4):
                r = b_ + 8 * e + 2 * j; t0, t1 = (26, 27) if j & 1 else (28, 29)
                if k_ == "a":
                    ins = [V("v_accvgpr_read_b32", f"v{t0}", f"a{r}"), V("v_accvgpr_read_b32", f"v{t1}", f"a{r+1}"),
                           V("v_mul_f32", f"v{t0}", f"v{t0}", "v25"), V("v_mul_f32", f"v{t1}", f"v{t1}", "v25")]
                else:
                    ins = [V("v_mul_f32", f"v{t0}", f"v{r}", "v25"), V("v_mul_f32", f"v{t1}", f"v{r+1}", "v25")]
                P(ins + [V("v_cvt_pk_bf16_f32", f"v{dq+j}", f"v{t0}", f"v{t1}")], after=aft, before=bef)
            fi = 2 * T + e
            if fi and fi % 4 == 0: P([S("s_add_u32", "s70", "s70", 4096)])
            P([BST(4, rs("v", dq, 4), "v24", "s[28:31]", "s70", (fi & 3) * 1024, OPT["st_mods"])])
    ss = [Item(STAMP(4 + k), after=ix, before=ix + 1) for k, ix in enumerate([0, iWQ, iS, iPV, len(mf) - 2])] if OPT["stamp"] else []
    fi_ = [k for k, x in enumerate(pro) if x.t == "@FIRST"][0]
    pro = pro[:fi_] + head.pop(-1) + pro[fi_ + 1:]
    main, hist = schedule2(mf, head, tail_, [dstream, ts, ss, es, vs], cap=OPT["budget"])
    code = resolve_waits(pro + main)
    code, nn = fix_hazards(code)
    code += [RAW("s_cbranch_vccz K1_FIN")] + k1_slow() + [LABEL("K1_FIN")] + fix_hazards(STAMP_OUT(9, 0))[0]
    check_scc(code)
    code.append(LABEL("K1_END"))
    print(f"K1: {len(code)} instrs, {len(mf)} mfma, {nn} nops inserted", file=sys.stderr)
    return code

FLAGO = 24 << 20
PARTO = 25 << 20
def lf_order(N):
    if not OPT["lf"]: return [list(range(N))] * 4
    if OPT["lf"] == 1:
        order = [[g] for g in range(4)]; fat = {g: 0 for g in range(4)}; nx = 4; lead = lambda t, g: t % 4 == g
    else:
        order = [[g >> 1] for g in range(4)]; fat = {0: 0, 1: 0}; nx = 2
        lead = lambda t, g: (g & 1) == (t + 1) & 1 if t <= OPT["lf"] else t % 4 == g
    for t in range(1, N):
        for g in range(4):
            p = [c_ for c_ in sorted(fat) if c_ not in order[g] and fat[c_] < t]
            if (lead(t, g) or not p) and nx < N: order[g].append(nx); fat[nx] = t; nx += 1
            else: order[g].append(p[0])
    assert all(sorted(o) == list(range(N)) for o in order)
    return order
def k2():
    c = []; A = c.append; E = c.extend
    LA = OPT["LA"]; NS = LA + 2; LB = OPT["LB"]; RD = OPT["RD"]; AK = OPT["AK"]; XO = OPT["xo"]
    A(RAW("s_cmp_ge_u32 s2, 224")); A(RAW("s_cbranch_scc1 K2_END"))
    E(STAMP(0))
    A(RAW("s_load_dwordx16 s[32:47], s[0:1], 0")); A(RAW("s_load_dwordx8 s[48:55], s[0:1], 64"))
    A(V("v_lshrrev_b32", "v26", 6, "v0")); A(V("v_and_b32", "v0", 63, "v0"))
    A(V("v_readfirstlane_b32", "s56", "v26"))
    A(S("s_and_b32", "s3", "s2", 3)); A(S("s_lshr_b32", "s4", "s2", 3))
    A(S("s_mul_i32", "s5", "s4", 9363)); A(S("s_lshr_b32", "s5", "s5", 16))
    A(S("s_mul_i32", "s6", "s5", 7)); A(S("s_sub_u32", "s6", "s4", "s6"))
    A(S("s_sub_u32", "s7", "s5", "s6")); A(S("s_and_b32", "s7", "s7", 3)); A(S("s_lshl_b32", "s58", "s7", 3))
    A(S("s_lshl_b32", "s3", "s3", 2)); A(S("s_add_u32", "s5", "s5", "s3"))
    A(S("s_lshl_b32", "s57", "s56", 12))
    A(V("v_lshrrev_b32", "v27", 3, "v0")); A(V("v_and_b32", "v28", 7, "v0"))
    A(V("v_lshrrev_b32", "v19", 2, "v0")); A(V("v_and_b32", "v19", 4, "v19")); A(V("v_xor_b32", "v19", "v28", "v19")); A(V("v_lshlrev_b32", "v19", 4, "v19"))
    A(S("s_mul_i32", "s61", "s56", 32 * 896))
    A(V("v_mul_u32_u24", "v1", 896, "v27")); A(V("v_add3_u32", "v1", "v1", "v19", "s61"))
    for q in range(1, 4): A(V("v_add_u32", f"v{1+q}", 6144, f"v{q}"))
    A(V("v_lshlrev_b32", "v5", 4, "v0")); A(V("v_add_u32", "v6", 4096, "v5"))
    A(S("s_lshl_b32", "s60", "s5", 2)); A(S("s_add_u32", "s60", "s60", "s56"))
    A(RAW("s_waitcnt lgkmcnt(0)"))
    A(S("s_lshl_b32", "s61", "s6", 7)); E(srd_off(8, 48, "s61", 1792 * 896)); E(srd_off(12, 40, "s61", 4096 * 896))
    A(S("s_mul_i32", "s61", "s60", NKAP * 1024)); E(srd_off(16, 54, "s61", 64 * NKAP * 1024))
    A(RAW("s_bitcmp1_b32 s2, 2")); A(RAW("s_cbranch_scc0 K2_PROD"))
    head = fix_hazards(c)[0]
    BR = 64; AF = 32; XR = 224; G = 192; CA = 128 * 896; CB = 8192
    def body(cons):
        c = []; A = c.append; E = c.extend
        NF = 14 if cons else 0; N = NF + XO if cons else 32 - XO
        o0 = 0 if cons else XO
        order = lf_order(N)
        mixed = [t for t in range(N) if len({o[t] < NF for o in order}) > 1]
        lastF = max([t for t in range(N) if any(o[t] < NF for o in order)], default=-1)
        aS, bS, bF = ((o0 - NF) * CA) & 0xffffffff, ((o0 - NF) * CB) & 0xffffffff, 256 * 1024
        def issueA(t):
            if t >= N: return
            isF = order[0][t] < NF
            sb = 92 + 2 * (t & 3)
            sr = "s[68:71]" if t in mixed else ("s[8:11]" if isF else "s[12:15]")
            A(S("s_lshr_b32", "s61", hex(sum(order[g][t] << (8 * g) for g in range(4))), "s58")); A(S("s_and_b32", "s61", "s61", 255))
            A(S("s_mul_i32", f"s{sb}", "s61", CA)); A(S("s_lshl_b32", f"s{sb+1}", "s61", 13))
            if t in mixed:
                A(RAW(f"s_cmp_lt_u32 s61, {NF}"))
                for k in range(3): A(S("s_cselect_b32", f"s{68+k}", f"s{8+k}", f"s{12+k}"))
                A(S("s_cselect_b32", "s59", 0, hex(aS))); A(S("s_mov_b32", "s61", hex(bS))); A(S("s_cselect_b32", "s61", hex(bF), "s61")); A(S("s_mov_b32", "s71", "0x20000"))
                A(S("s_add_u32", f"s{sb}", f"s{sb}", "s59")); A(S("s_add_u32", f"s{sb+1}", f"s{sb+1}", "s61"))
            else:
                if not isF: A(S("s_add_u32", f"s{sb}", f"s{sb}", hex(aS)))
                A(S("s_add_u32", f"s{sb+1}", f"s{sb+1}", hex(bF if isF else bS)))
            A(S("s_add_u32", "m0", "s57", (t % NS) * 16384))
            for q in range(4): A(DMA(f"v{1+q}", sr, f"s{sb}", q * 1024, ("a", t), OPT["k2a"]))
        def breg(t, k): return BR + ((t & 1) * 8 + k) * 4
        def tab(t): return hex(sum(order[g][t] << (8 * g) for g in range(4)))
        def issueB(u):
            t, k = u >> 3, u & 7
            if t < N: A(BLD(4, rs("v", breg(t, k), 4), f"v{5 + (k >> 2)}", "s[16:19]", f"s{93 + 2 * (t & 3)}", (k & 3) * 1024, ("b", t, k), OPT["k2b"]))
        for t in range(LA):
            issueA(t)
            for u in range(8 * t, min(8 * t + 8, LB)): issueB(u)
            if t == 0:
                A(V("v_lshrrev_b32", "v20", 5, "v0")); A(V("v_bfe_u32", "v21", "v0", 4, 1)); A(V("v_bfe_u32", "v22", "v0", 2, 2)); A(V("v_and_b32", "v23", 3, "v0"))
                A(V("v_lshlrev_b32", "v16", 7, "v22")); A(V("v_lshrrev_b32", "v17", 1, "v22")); A(V("v_lshl_add_u32", "v16", "v17", 6, "v16"))
                A(V("v_lshl_add_u32", "v16", "v20", 9, "v16")); A(V("v_and_b32", "v17", 1, "v23")); A(V("v_lshl_add_u32", "v16", "v17", 5, "v16"))
                A(V("v_lshl_add_u32", "v16", "v21", 4, "v16")); A(V("v_lshrrev_b32", "v17", 1, "v23")); A(V("v_lshl_add_u32", "v8", "v17", 3, "v16"))
                A(V("v_xor_b32", "v9", 64, "v8"))
                A(S("s_add_u32", "s20", "s54", hex(FLAGO))); A(S("s_addc_u32", "s21", "s55", 0)); A(S("s_mov_b32", "s22", 8 << 20)); A(S("s_mov_b32", "s23", "0x20000"))
                A(S("s_mul_i32", "s61", "s5", 7)); A(S("s_add_u32", "s61", "s61", "s6")); A(S("s_lshl_b32", "s66", "s61", 8))
                A(S("s_lshl_b32", "s67", "s61", 15)); A(S("s_lshl_b32", "s61", "s56", 13)); A(S("s_add_u32", "s67", "s67", "s61")); A(S("s_add_u32", "s67", "s67", hex(PARTO - FLAGO)))
                A(V("v_mov_b32", "v10", 0))
                if cons:
                    for i in range(32): A(V("v_accvgpr_write_b32", f"a{32+i}", 0))
                    E(srd(24, "s50", "s51", hex(2048 * 896))); E(srd(28, "s32", "s33", hex(2048 * 896)))
                    A(S("s_mul_i32", "s61", "s60", 32 * 896)); A(S("s_lshl_b32", "s59", "s6", 7)); A(S("s_add_u32", "s61", "s61", "s59"))
                    A(V("v_mul_u32_u24", "v16", 896, "v27")); A(V("v_lshl_add_u32", "v16", "v28", 4, "v16")); A(V("v_add_u32", "v7", "s61", "v16"))
                    for q in range(1, 4): A(S("s_mov_b32", f"s{61+q}", 7168 * q))
                    A(S("s_lshl_b32", "s61", "s56", 13)); A(S("s_add_u32", "s61", "s61", NS * 16384))
                    A(V("v_and_b32", "v16", 31, "v0")); A(V("v_lshlrev_b32", "v17", 2, "v20")); A(V("v_xor_b32", "v17", "v17", "v28")); A(V("v_lshlrev_b32", "v17", 4, "v17"))
                    A(V("v_lshl_add_u32", "v16", "v16", 8, "v17")); A(V("v_add_u32", "v12", "s61", "v16"))
                    for j in range(1, 4): A(V("v_xor_b32", f"v{12+j}", 16 * j, "v12"))
                    A(V("v_lshlrev_b32", "v17", 1, "v28")); A(V("v_xor_b32", "v17", "v17", "v27")); A(V("v_lshlrev_b32", "v17", 4, "v17"))
                    A(V("v_lshl_add_u32", "v16", "v27", 8, "v17")); A(V("v_add_u32", "v24", "s61", "v16")); A(V("v_xor_b32", "v25", 16, "v24"))
        la = [AReg(8), AReg(9)]
        def rd(u):
            t, k = u >> 3, u & 7
            if t >= N: return
            if k == 0: A(WAITV([("a", t)])); A(BAR())
            for cb in range(2):
                r = AF + (u & 3) * 8 + 4 * cb
                pre, o = la[cb].at((t % NS) * 16384 + k * 2048); E(pre)
                A(DSR("ds_read_b64_tr_b16", rs("v", r, 2), f"v{8+cb}", o, tag=(u, cb, 0))); A(DSR("ds_read_b64_tr_b16", rs("v", r + 2, 2), f"v{8+cb}", o + 1024, tag=(u, cb, 1)))
        PR = 128; P2 = 160; assert LB <= 8 * LA - AK + 0 or True
        assert all(any(o[t] < NF for o in order) for t in range(lastF + 1))
        def pload():
            for q in range(8): A(BLD(4, rs("v", PR + 4 * q, 4), f"v{5 + (q >> 2)}", "s[20:23]", "s67", (q & 3) * 1024, ("p", q), " sc1"))
        E(STAMP(1))
        for u in range(RD): rd(u)
        for t in range(N):
            if t in (10, 15, 20): E(STAMP({10: 2, 15: 3, 20: 4}[t]))
            if t in mixed: A(I(f"@B {t}", "label", cost=0))
            ab = 0 if t <= lastF else 32
            for k in range(8):
                u = 8 * t + k
                if k == AK: issueA(t + LA)
                if cons and u == OPT["xat"]:
                    for q in range(4): A(BLD(4, rs("v", XR + 4 * q, 4), "v7", "s[28:31]", f"s{61+q}" if q else 0, 0, "x"))
                if cons and u == 8 * N - OPT["fa"]: A(BLD(1, "v11", "v10", "s[20:23]", "s66", 0, "fl", " sc1"))
                if cons and u == 8 * N - OPT["fb"]:
                    E(STAMP(5))
                    A(WAITV(["fl"])); A(V("v_readfirstlane_b32", "s59", "v11")); A(S("s_mov_b32", "s61", 1 << 16)); A(NOP(4))
                    A(RAW("s_cmp_lg_u32 s59, 0")); A(RAW("s_cbranch_scc1 K2_GOT"))
                    A(LABEL("K2_POLL"))
                    A(RAW("buffer_load_dword v11, v10, s[20:23], s66 offen sc1")); A(RAW("s_waitcnt vmcnt(0)")); A(V("v_readfirstlane_b32", "s59", "v11"))
                    A(S("s_sub_u32", "s61", "s61", 1)); A(NOP(4)); A(RAW("s_cmp_lg_u32 s59, 0")); A(S("s_cselect_b32", "s61", 0, "s61"))
                    A(RAW("s_cmp_lg_u32 s61, 0")); A(RAW("s_cbranch_scc1 K2_POLL"))
                    A(LABEL("K2_GOT")); E(STAMP(6))
                    pload()
                A(WAITV([("b", t, k)]))
                for cb in range(2):
                    d = rs("a", ab + 16 * cb, 16)
                    A(MFMA(d, rs("v", AF + (u & 3) * 8 + 4 * cb, 4), rs("v", breg(t, k), 4), "0" if u == 0 else d, need=[(u, cb, 0), (u, cb, 1)]))
                    if cb == 0: rd(u + RD)
                issueB(u + LB)
                e = u - 8 * (lastF + 1) - 2
                if cons and 0 <= e < 33 and OPT["silu"]:
                    if e: A(V("v_add_f32", "v16", 1.0, "v16")); A(V("v_rcp_f32", "v17", "v16"))
                    if e < 32:
                        r = f"v{G+e}"
                        A(V("v_accvgpr_read_b32", r, f"a{e}")); A(V("v_mul_f32", r, hex(f2u(1.0 / (CSC * CSC))), r)); A(V("v_mul_f32", "v16", hex(f2u(-LOG2E)), r))
                    if e: A(V("v_mul_f32", f"v{G+e-1}", f"v{G+e-1}", "v17"))
                    if e < 32: A(V("v_exp_f32", "v16", "v16"))
            if t in mixed: A(I("@E", "label", cost=0))
        if not cons:
            E(STAMP(5))
            for q in range(8): A(BST(4, rs("a", 32 + 4 * q, 4), f"v{5 + (q >> 2)}", "s[20:23]", "s67", (q & 3) * 1024, " sc1"))
            A(V("v_mov_b32", "v11", 1))
            A(RAW("s_waitcnt vmcnt(0)")); A(BAR()); E(STAMP(6))
            A(RAW("s_cmp_eq_u32 s56, 0")); A(RAW("s_cbranch_scc0 K2_FIN"))
            A(BST(1, "v11", "v10", "s[20:23]", "s66", 0, " sc1"))
        else:
            for q in range(8):
                for i in range(4 * q, 4 * q + 4): A(V("v_accvgpr_read_b32", f"v{P2+i}", f"a{32+i}"))
                A(WAITV([("p", q)]))
                for i in range(4 * q, 4 * q + 4): A(V("v_add_f32", f"v{PR+i}", f"v{PR+i}", f"v{P2+i}"))
                for i in range(4 * q, 4 * q + 4): A(V("v_mul_f32", f"v{PR+i}", f"v{PR+i}", f"v{G+i}"))
                A(DSW("ds_write_b128", f"v{12 + (q & 3)}", rs("v", PR + 4 * q, 4), 128 * (q >> 2), tag=("y", q)))
            for q in range(4):
                for h_ in range(2): A(DSR("ds_read_b128", rs("v", P2 + 8 * q + 4 * h_, 4), f"v{24+h_}", 2048 * q, tag=("z", q, h_)))
            for q in range(4):
                for j in range(4):
                    A(V("v_lshlrev_b32", f"v{PR+2*j}", 16, f"v{XR+4*q+j}")); A(V("v_and_b32", f"v{PR+2*j+1}", "0xffff0000", f"v{XR+4*q+j}"))
                A(WAITL([("z", q, 1)]))
                for i in range(8): A(V("v_add_f32", f"v{PR+i}", f"v{PR+i}", f"v{P2+8*q+i}"))
                for j in range(4): A(V("v_cvt_pk_bf16_f32", f"v{XR+4*q+j}", f"v{PR+2*j}", f"v{PR+2*j+1}"))
                A(BST(4, rs("v", XR + 4 * q, 4), "v7", "s[24:27]", f"s{61+q}" if q else 0, 0, OPT["ost"]))
            A(RAW("s_branch K2_FIN"))
        code = resolve_waits(c, look=1)
        code, nn = fix_hazards(code)
        out = []; blk = None
        for x in code:
            if x.t.startswith("@B"): blk = []; t = int(x.t.split()[1]); continue
            if x.t == "@E":
                sv = []
                for y in blk:
                    if y.k == "mfma":
                        d, a_, b_, c_ = y.t.split(" ", 1)[1].split(", ")
                        d2 = rs("a", y.wr[0][1] + 32, 16)
                        sv.append(MFMA(d2, a_, b_, d2))
                    else: sv.append(y)
                out += [S("s_lshr_b32", "s61", tab(t), "s58"), S("s_and_b32", "s61", "s61", 255), RAW(f"s_cmp_ge_u32 s61, {NF}"), RAW(f"s_cbranch_scc1 K2_S{t}")] + blk + \
                       [RAW(f"s_branch K2_E{t}"), LABEL(f"K2_S{t}")] + sv + [LABEL(f"K2_E{t}")]
                blk = None; continue
            (out if blk is None else blk).append(x)
        return out
    code = head + body(True) + [LABEL("K2_PROD")] + body(False) + [LABEL("K2_FIN")] + fix_hazards(STAMP_OUT(7, 65536 * 4))[0]
    check_scc(code)
    code.append(LABEL("K2_END"))
    print(f"K2: {len(code)} instrs", file=sys.stderr)
    return code

def kd(name, vg, acc):
    return f""".p2align 6
.amdhsa_kernel {name}
  .amdhsa_next_free_vgpr {vg}
  .amdhsa_next_free_sgpr 102
  .amdhsa_accum_offset {acc}
  .amdhsa_group_segment_fixed_size 0
  .amdhsa_kernarg_size 96
  .amdhsa_user_sgpr_count 2
  .amdhsa_user_sgpr_kernarg_segment_ptr 1
  .amdhsa_system_sgpr_workgroup_id_x 1
.end_amdhsa_kernel
"""
def build():
    ref = open(f"cdna_kernels/{NAME}.s.ref").read().split("\n")
    head = [l for l in ref if l.startswith(";") and "@launch" not in l and "Override" not in l and "grid=ceil" not in l]
    s = "\n".join(head) + "\n"
    s += "; @launch kernel=attn_kernel grid=(256,1,1) block=(256,1,1) lds=163840\n"
    s += "; @launch kernel=proj_kernel grid=(224,1,1) block=(256,1,1) lds=98304\n"
    s += '.amdgcn_target "amdgcn-amd-amdhsa--gfx950"\n.text\n'
    for nm, fn in (("attn_kernel", k1), ("proj_kernel", k2)):
        s += f".globl {nm}\n.p2align 8\n.type {nm},@function\n{nm}:\n" + text(fn()) + "  s_endpgm\n"
    s += '.section .rodata,"a"\n' + kd("attn_kernel", 512, 256) + kd("proj_kernel", 320, 256)
    return s
if __name__ == "__main__":
    for a in sys.argv[2:]:
        k, v = a.split("="); OPT[k] = type(OPT[k])(v)
    open(sys.argv[1], "w").write(build())
```
